```python
import torch

def _softmax(x, axis=-1):
    return torch.softmax(x, dim=axis)
def _gelu(x):
    return torch.nn.functional.gelu(x, approximate="tanh")
def _silu(x):
    return torch.nn.functional.silu(x)
def _sigmoid(x):
    return torch.sigmoid(x)
def _layernorm(x, axis=-1, eps=1e-5):
    m = x.mean(dim=axis, keepdim=True)
    v = x.var(dim=axis, keepdim=True, unbiased=False)
    return (x - m) / torch.sqrt(v + eps)
def _scatter_add(tgt, idx, src, axis=0):
    return tgt.clone().index_add_(axis, idx, src)
def _segment_sum(src, seg, n):
    out = torch.zeros((n,) + src.shape[1:], dtype=src.dtype)
    return out.index_add_(0, seg, src)
def _pad(x, pw):
    flat = tuple(v for pair in reversed(pw) for v in pair)
    return torch.nn.functional.pad(x, flat)

kernel_name = 'recurrent_scan__ssm_conv_s5__dense_activation_silu__prompt'

def setup_inputs():

    _w = (lambda a: (lambda t: t.to(torch.bfloat16) if t.is_floating_point() else t)(torch.as_tensor(a)))
    def _A_setup():
        B, S, D = 1, 2048, 640
        P = D
        Lambda_re = -0.5 * (lambda _x: torch.exp(torch.as_tensor(_x)))((lambda *s: torch.randn(*s, dtype=torch.bfloat16) * 0.8)(P))
        Lambda_im = (lambda *s: torch.randn(*s, dtype=torch.bfloat16) * 0.8)(P) * 1.0
        B_re = (lambda *s: torch.randn(*s, dtype=torch.bfloat16) * 0.8)(P, D) * (D ** -0.5)
        B_im = (lambda *s: torch.randn(*s, dtype=torch.bfloat16) * 0.8)(P, D) * (D ** -0.5)
        C_re = (lambda *s: torch.randn(*s, dtype=torch.bfloat16) * 0.8)(D, P) * (P ** -0.5)
        C_im = (lambda *s: torch.randn(*s, dtype=torch.bfloat16) * 0.8)(D, P) * (P ** -0.5)
        log_dt = (lambda *s: torch.randn(*s, dtype=torch.bfloat16) * 0.8)(P) * 0.3 - 2.0
        Dskip = (lambda *s: torch.randn(*s, dtype=torch.bfloat16) * 0.4)(D)
        return {
            "x": _w((lambda *s: torch.randn(*s, dtype=torch.bfloat16) * 0.05)(B, S, D)),
            "Lambda_re": _w(Lambda_re),
            "Lambda_im": _w(Lambda_im),
            "B_re": _w(B_re),
            "B_im": _w(B_im),
            "C_re": _w(C_re),
            "C_im": _w(C_im),
            "log_dt": _w(log_dt),
            "Dskip": _w(Dskip),
        }
    _A_in = _A_setup()

    def _B_setup():
        B, S, D, F = 1, 2048, 640, 1536
        return {
            "x": _w((lambda *s: torch.randn(*s, dtype=torch.bfloat16) * 0.05)(B, S, D)),
            "w1": _w((lambda *s: torch.randn(*s, dtype=torch.bfloat16) * 0.8)(D, F) * (D ** -0.5)),
            "w2": _w((lambda *s: torch.randn(*s, dtype=torch.bfloat16) * 0.1)(F, D) * (F ** -0.5)),
        }
    _B_in = _B_setup()

    return {
        "A_x": _A_in["x"],
        "A_Lambda_re": _A_in["Lambda_re"],
        "A_Lambda_im": _A_in["Lambda_im"],
        "A_B_re": _A_in["B_re"],
        "A_B_im": _A_in["B_im"],
        "A_C_re": _A_in["C_re"],
        "A_C_im": _A_in["C_im"],
        "A_log_dt": _A_in["log_dt"],
        "A_Dskip": _A_in["Dskip"],
        "B_x": _B_in["x"],
        "B_w1": _B_in["w1"],
        "B_w2": _B_in["w2"],
    }

def reference(A_x, A_Lambda_re, A_Lambda_im, A_B_re, A_B_im, A_C_re, A_C_im, A_log_dt, A_Dskip, B_x, B_w1, B_w2):
    def _A_ref(x, Lambda_re, Lambda_im, B_re, B_im, C_re, C_im, log_dt, Dskip):
        Bsz, L, H = x.shape
        Lam = Lambda_re + 1j * Lambda_im
        Bmat = B_re + 1j * B_im
        Cmat = C_re + 1j * C_im
        dt = torch.exp(log_dt)
        Lam_bar = torch.exp(dt * Lam)
        B_bar = ((Lam_bar - 1.0) / Lam)[:, None] * Bmat
        Bu = torch.einsum("bld,pd->blp", x + 0j, B_bar)
        h = torch.zeros_like(Bu[:, 0, :])
        hs = []
        for t in range(L):
            h = Lam_bar[None, :] * h + Bu[:, t, :]
            hs.append(h)
        hseq = torch.stack(hs, 1)
        y = 2.0 * torch.einsum("blp,dp->bld", hseq, Cmat).real + x * Dskip[None, None, :]
        return y

    def _B_ref(x, w1, w2):
        h = torch.einsum("bsd,df->bsf", x, w1)
        h = _silu(h)
        out = torch.einsum("bsf,fd->bsd", h, w2)
        return out

    x = A_x
    xn = _layernorm(x, axis=-1)
    s = _A_ref(xn, A_Lambda_re, A_Lambda_im, A_B_re, A_B_im, A_C_re, A_C_im, A_log_dt, A_Dskip)
    g = _silu(_B_ref(xn, B_w1, B_w2))
    return x + s * g
```

```python
from gen import *

NBUF = 4
NSTAGE = 10
S_ROWS = 288
F_ROWS = 320
S_BUF = S_ROWS * 128
F_BUF = F_ROWS * 128
K1_LDS = NBUF * F_BUF
TBL_OFF = NBUF * S_BUF
AGGL_OFF = 2 * S_BUF
CARL_OFF = AGGL_OFF + 16 * 80 * 8

S_WS = 8
S_DBG = 12
S_LRE, S_LIM, S_LDT = 16, 20, 24
S_CB, S_RB, S_W = 30, 31, 32
S_K = 33
S_T0 = 34
S_ROWOFF = 40
LOG2E = 0x3FB8AA3B
INV2PI = 0x3E22F983


def main_loop(e, pfx, nA, nB, bufsz, nslot, vA, vB, vD, FR, ACC, swap):
    nfr = nA + nB

    def frag(setid, i):
        return FR + (setid * nfr + i) * 4

    def reads(s, ks, setid):
        buf = s % NBUF
        out = []
        for i in range(nA):
            out.append("ds_read_b128 %s, v%d offset:%d" % (vr(frag(setid, i), 4), vA[ks][buf], i * 2048))
        for j in range(nB):
            out.append("ds_read_b128 %s, v%d offset:%d" % (vr(frag(setid, nA + j), 4), vB[ks][buf], j * 2048))
        return out

    def dma(s):
        buf = s % NBUF
        out = [["s_movk_i32 s%d, %d" % (S_K, 128 * s)]]
        for i in range(nslot):
            out.append(["s_add_u32 m0, s%d, %d" % (S_T0, buf * bufsz + i * 4096),
                        "s_nop 0",
                        "buffer_load_dwordx4 v%d, s[%d:%d], s%d offen lds" % (vD + i, S_WS, S_WS + 3, S_K)])
        return out

    def mfmas(setid, first):
        out = []
        for i in range(nA):
            for j in range(nB):
                acc = ACC + (i * nB + j) * 4
                a, b = frag(setid, i), frag(setid, nA + j)
                if swap:
                    a, b = b, a
                c = "0" if first else vr(acc, 4)
                out.append("v_mfma_f32_16x16x32_bf16 %s, %s, %s, %s" % (vr(acc, 4), vr(a, 4), vr(b, 4), c))
        return out

    def interleave(mf, extra):
        n = len(mf)
        k = 0
        for idx, m in enumerate(mf):
            e(m)
            if k < len(extra):
                for ins in extra[k]:
                    e(ins)
                k += 1
        while k < len(extra):
            for ins in extra[k]:
                e(ins)
            k += 1

    e("s_lshl_b32 s%d, s%d, 10" % (S_T0, S_W))
    for s in range(3):
        for g in dma(s):
            for ins in g:
                e(ins)
    e("s_waitcnt vmcnt(%d)" % (2 * nslot))
    e("s_barrier")
    for r in reads(0, 0, 0):
        e(r)
    for s in range(NSTAGE):
        e("s_waitcnt lgkmcnt(0)")
        interleave(mfmas(0, s == 0), [[r] for r in reads(s, 1, 1)])
        extra = []
        if s + 1 < NSTAGE:
            e("s_waitcnt vmcnt(%d)" % (nslot if s + 2 < NSTAGE else 0))
            e("s_barrier")
            extra = [[r] for r in reads(s + 1, 0, 0)]
            if s + 3 < NSTAGE:
                d = dma(s + 3)
                merged = []
                for idx in range(max(len(extra), len(d))):
                    g = []
                    if idx < len(extra):
                        g += extra[idx]
                    if idx < len(d):
                        g += d[idx]
                    merged.append(g)
                extra = merged
        e("s_waitcnt lgkmcnt(0)")
        interleave(mfmas(1, False), extra)


def lds_read_addrs(e, base_v, rowbase_expr_v, bufsz, vtmp):
    for ks in range(2):
        e("v_lshrrev_b32 v%d, 1, v%d" % (vtmp + 2, vtmp))
        e("v_and_b32 v%d, 7, v%d" % (vtmp + 2, vtmp + 2))
        e("v_or_b32 v%d, %d, v%d" % (vtmp + 3, 4 * ks, vtmp + 1))
        e("v_xor_b32 v%d, v%d, v%d" % (vtmp + 2, vtmp + 2, vtmp + 3))
        e("v_lshlrev_b32 v%d, 4, v%d" % (vtmp + 2, vtmp + 2))
        e("v_lshl_add_u32 v%d, v%d, 7, v%d" % (vtmp + 2, vtmp, vtmp + 2))
        e("v_add_u32 v%d, v%d, v%d" % (vtmp + 2, vtmp + 2, rowbase_expr_v))
        for b in range(NBUF):
            e("v_add_u32 v%d, %d, v%d" % (base_v + ks * NBUF + b, b * bufsz, vtmp + 2))


def cmul(e, dr, di, ar, ai, br, bi, t):
    e("v_mul_f32 v%d, v%d, v%d" % (t, ar, br))
    e("v_mul_f32 v%d, v%d, v%d" % (t + 1, ar, bi))
    e("v_fma_f32 v%d, -v%d, v%d, v%d" % (t, ai, bi, t))
    e("v_fma_f32 v%d, v%d, v%d, v%d" % (t + 1, ai, br, t + 1))
    e("v_mov_b32 v%d, v%d" % (dr, t))
    e("v_mov_b32 v%d, v%d" % (di, t + 1))


def gen_k1(e):
    kernel_begin(e, "k1_kernel")
    e("s_cmp_ge_u32 s2, 256")
    e("s_cbranch_scc1 k1_exit")
    e("s_load_dwordx2 s[34:35], s[0:1], 8")
    e("s_load_dwordx2 s[36:37], s[0:1], 16")
    e("s_load_dwordx2 s[38:39], s[0:1], 56")
    e("s_load_dwordx4 s[40:43], s[0:1], 104")
    e("s_waitcnt lgkmcnt(0)")
    srd(e, S_WS, 42, 43, WS_USED)
    srd(e, S_DBG, 40, 41, 256)
    srd(e, S_LRE, 34, 35, P * 2)
    srd(e, S_LIM, 36, 37, P * 2)
    srd(e, S_LDT, 38, 39, P * 2)
    e("s_and_b32 s%d, s2, 7" % S_CB)
    e("s_lshr_b32 s%d, s2, 4" % S_RB)
    e("v_lshrrev_b32 v1, 6, v0")
    e("s_nop 0")
    e("v_readfirstlane_b32 s%d, v1" % S_W)
    e("v_and_b32 v2, 63, v0")
    e("v_and_b32 v3, 15, v0")
    e("v_lshrrev_b32 v4, 4, v2")
    e("s_and_b32 s34, s%d, 1" % S_W)
    e("s_lshl_b32 s35, s34, 2")
    e("v_add_u32 v5, s35, v4")
    e("v_and_b32 v5, 7, v5")
    e("v_and_b32 v6, 7, v2")
    e("v_xor_b32 v5, v5, v6")
    e("v_lshlrev_b32 v5, 4, v5")
    e("v_lshrrev_b32 v6, 3, v2")
    e("s_lshl_b32 s35, s%d, 3" % S_W)
    e("v_add_u32 v7, s35, v6")
    e("v_lshrrev_b32 v8, 5, v2")
    e("s_lshl_b32 s35, s34, 1")
    e("v_add_u32 v8, s35, v8")
    e("v_lshlrev_b32 v8, 3, v8")
    e("v_and_b32 v9, 3, v6")
    e("v_add_u32 v8, v8, v9")
    e("s_lshr_b32 s35, s%d, 1" % S_W)
    e("s_lshl_b32 s35, s35, 2")
    e("v_add_u32 v8, s35, v8")
    e("s_movk_i32 s36, %d" % XP)
    e("s_bitcmp1_b32 s2, 3")
    e("s_cbranch_scc1 k1_ffn")

    VD = 10
    VA = 20
    VB = 28
    FR = 40
    ACC = 136
    e("s_lshl_b32 s37, s%d, 7" % S_RB)
    e("v_add_u32 v9, s37, v8")
    e("v_mul_lo_u32 v9, v9, s36")
    e("v_add_u32 v9, v9, v5")
    for i in range(4):
        e("v_add_u32 v%d, %d, v9" % (VD + i, XN_OFF + i * 32 * XP))
    e("s_mul_i32 s37, s%d, 160" % S_CB)
    e("v_add_u32 v9, s37, v7")
    e("v_mul_lo_u32 v9, v9, s36")
    e("v_add_u32 v9, v9, v5")
    for i in range(5):
        e("v_add_u32 v%d, %d, v9" % (VD + 4 + i, W1_OFF + i * 32 * XP))
    e("s_mul_i32 s37, s%d, 80" % S_CB)
    e("v_add_u32 v9, s37, v0")
    e("v_lshlrev_b32 v9, 1, v9")
    e("buffer_load_ushort v40, v9, s[%d:%d], 0 offen" % (S_LRE, S_LRE + 3))
    e("buffer_load_ushort v41, v9, s[%d:%d], 0 offen" % (S_LIM, S_LIM + 3))
    e("buffer_load_ushort v42, v9, s[%d:%d], 0 offen" % (S_LDT, S_LDT + 3))
    e("s_lshl_b32 s37, s%d, 12" % S_W)
    e("v_mov_b32 v36, s37")
    lds_read_addrs(e, VA, 36, S_BUF, 3)
    e("v_mov_b32 v36, %d" % (128 * 128))
    lds_read_addrs(e, VB, 36, S_BUF, 3)
    e("s_waitcnt vmcnt(0)")
    e("v_lshlrev_b32 v40, 16, v40")
    e("v_lshlrev_b32 v41, 16, v41")
    e("v_lshlrev_b32 v42, 16, v42")
    e("s_mov_b32 s37, 0x%x" % LOG2E)
    e("s_mov_b32 s38, 0x%x" % INV2PI)
    e("v_mul_f32 v42, s37, v42")
    e("v_exp_f32 v42, v42")
    e.nop(1)
    rne_bf16(e, 42, 42)
    e("v_mul_f32 v43, v42, v40")
    e("v_mul_f32 v44, v42, v41")
    e("v_mul_f32 v43, s37, v43")
    e("v_exp_f32 v43, v43")
    e("v_mul_f32 v44, s38, v44")
    e("v_rndne_f32 v45, v44")
    e("v_sub_f32 v44, v44, v45")
    e("v_sin_f32 v45, v44")
    e("v_cos_f32 v46, v44")
    e.nop(1)
    e("v_mul_f32 v48, v43, v46")
    e("v_mul_f32 v49, v43, v45")
    e("v_add_f32 v45, -1.0, v48")
    e("v_mul_f32 v46, v40, v40")
    e("v_fma_f32 v46, v41, v41, v46")
    e("v_rcp_f32 v47, v46")
    e("v_mul_f32 v50, v45, v40")
    e("v_fma_f32 v50, v49, v41, v50")
    e("v_mul_f32 v51, v49, v40")
    e("v_fma_f32 v51, -v45, v41, v51")
    e("v_add_f32 v47, v47, v47")
    e("v_mul_f32 v50, v50, v47")
    e("v_mul_f32 v51, v51, v47")
    e("v_mov_b32 v52, v48")
    e("v_mov_b32 v53, v49")
    for _ in range(3):
        cmul(e, 52, 53, 52, 53, 52, 53, 56)
    e("v_mov_b32 v54, v52")
    e("v_mov_b32 v55, v53")
    for _ in range(4):
        cmul(e, 54, 55, 54, 55, 54, 55, 56)
    e("v_lshlrev_b32 v9, 5, v0")
    e("v_add_u32 v9, %d, v9" % TBL_OFF)
    e("ds_write_b128 v9, v[48:51]")
    e("ds_write_b128 v9, v[52:55] offset:16")
    e("s_waitcnt lgkmcnt(0)")

    main_loop(e, "k1s", 2, 10, S_BUF, 9,
              [[VA + ks * NBUF + b for b in range(NBUF)] for ks in range(2)],
              [[VB + ks * NBUF + b for b in range(NBUF)] for ks in range(2)],
              VD, FR, ACC, False)

    def ur(j, s):
        return ACC + ((s >> 2) * 10 + j) * 4 + (s & 3)

    def ui(j, s):
        return ACC + ((s >> 2) * 10 + 5 + j) * 4 + (s & 3)

    CST = 40
    HST = 60
    TMP = 70
    e("v_lshlrev_b32 v9, 5, v3")
    e("v_add_u32 v9, %d, v9" % TBL_OFF)
    for j in range(5):
        e("ds_read_b128 %s, v9 offset:%d" % (vr(CST + 4 * j, 4), j * 512))
    e.nop(8)
    e("s_waitcnt lgkmcnt(0)")
    for j in range(5):
        e("v_mov_b32 v%d, v%d" % (HST + 2 * j, ur(j, 0)))
        e("v_mov_b32 v%d, v%d" % (HST + 2 * j + 1, ui(j, 0)))
    for s in range(1, 8):
        for j in range(5):
            hr, hi = HST + 2 * j, HST + 2 * j + 1
            ar, ai = CST + 4 * j, CST + 4 * j + 1
            t = TMP + 2 * j
            e("v_fma_f32 v%d, -v%d, v%d, v%d" % (t, ai, hi, ur(j, s)))
            e("v_fma_f32 v%d, v%d, v%d, v%d" % (t + 1, ai, hr, ui(j, s)))
        for j in range(5):
            hr, hi = HST + 2 * j, HST + 2 * j + 1
            ar, ai = CST + 4 * j, CST + 4 * j + 1
            t = TMP + 2 * j
            e("v_fma_f32 v%d, v%d, v%d, v%d" % (hr, ar, hr, t))
            e("v_fma_f32 v%d, v%d, v%d, v%d" % (hi, ar, hi, t + 1))
    e("s_lshl_b32 s37, s%d, 2" % S_W)
    e("v_add_u32 v80, s37, v4")
    e("v_mul_u32_u24 v80, 80, v80")
    e("v_add_u32 v80, v80, v3")
    e("v_lshlrev_b32 v80, 3, v80")
    e("v_add_u32 v81, %d, v80" % AGGL_OFF)
    for j in range(5):
        e("ds_write_b64 v81, %s offset:%d" % (vr(HST + 2 * j, 2), j * 128))
    e("s_waitcnt lgkmcnt(0)")
    e("s_barrier")
    e("v_cmp_gt_u32 vcc, 80, v0")
    e("s_and_saveexec_b64 s[48:49], vcc")
    e("s_cbranch_execz k1s_nocomb")
    AG = 84
    e("v_lshlrev_b32 v82, 5, v0")
    e("v_add_u32 v82, %d, v82" % TBL_OFF)
    e("ds_read_b128 v[116:119], v82 offset:16")
    e("v_lshlrev_b32 v82, 3, v0")
    e("v_add_u32 v83, %d, v82" % AGGL_OFF)
    for q in range(16):
        e("ds_read_b64 %s, v83 offset:%d" % (vr(AG + 2 * q, 2), q * 640))
    e("s_waitcnt lgkmcnt(0)")
    e("v_mov_b32 v120, v%d" % AG)
    e("v_mov_b32 v121, v%d" % (AG + 1))
    for q in range(1, 16):
        e("v_fma_f32 v122, -v117, v121, v%d" % (AG + 2 * q))
        e("v_fma_f32 v123, v117, v120, v%d" % (AG + 2 * q + 1))
        e("v_fma_f32 v120, v116, v120, v122")
        e("v_fma_f32 v121, v116, v121, v123")
    e("s_mul_i32 s37, s%d, 80" % S_CB)
    e("v_add_u32 v124, s37, v0")
    e("v_lshlrev_b32 v124, 3, v124")
    e("v_add_u32 v124, %d, v124" % AGG_OFF)
    e("s_mul_i32 s37, s%d, %d" % (S_RB, P * 8))
    e("buffer_store_dwordx2 v[120:121], v124, s[%d:%d], s37 offen sc1" % (S_WS, S_WS + 3))
    e("s_waitcnt vmcnt(0)")
    e("s_lshl_b32 s37, s%d, 1" % S_RB)
    e("s_lshl_b32 s38, 1, s37")
    e("v_mov_b32 v125, s38")
    e("s_lshl_b32 s39, s%d, 2" % S_CB)
    e("v_mov_b32 v126, s39")
    e("s_mov_b64 s[50:51], exec")
    e("s_mov_b64 exec, 1")
    e("buffer_atomic_add v125, v126, s[%d:%d], 0 offen" % (S_DBG, S_DBG + 3))
    e("s_mov_b64 exec, s[50:51]")
    e("v_mov_b32 v120, 0")
    e("v_mov_b32 v121, 0")
    e("s_cmp_eq_u32 s%d, 0" % S_RB)
    e("s_cbranch_scc1 k1s_nocarry")
    e("s_sub_u32 s38, s38, 1")
    e("s_and_b32 s39, s38, 0xaaaaaaaa")
    e("s_mov_b32 s52, 0")
    e.label("k1s_poll")
    e("buffer_load_dword v125, v126, s[%d:%d], 0 offen sc1" % (S_DBG, S_DBG + 3))
    e("s_waitcnt vmcnt(0)")
    e("v_readfirstlane_b32 s53, v125")
    e("s_and_b32 s53, s53, s38")
    e("s_cmp_eq_u32 s53, s39")
    e("s_cbranch_scc1 k1s_polled")
    e("s_sleep 1")
    e("s_add_u32 s52, s52, 1")
    e("s_cmp_lt_u32 s52, 0x100000")
    e("s_cbranch_scc1 k1s_poll")
    e.label("k1s_polled")
    PG = 136 + 80
    for c in range(15):
        e("buffer_load_dwordx2 %s, v124, s[%d:%d], 0 offen offset:%d sc1" % (vr(PG + 2 * c, 2), S_WS, S_WS + 3, 0))
        if c < 14:
            e("v_add_u32 v124, %d, v124" % (P * 8))
    e("s_waitcnt vmcnt(0)")
    for c in range(15):
        e("s_cmp_gt_u32 s%d, %d" % (S_RB, c))
        e("s_cbranch_scc0 k1s_nocarry")
        e("v_fma_f32 v122, -v119, v121, v%d" % (PG + 2 * c))
        e("v_fma_f32 v123, v119, v120, v%d" % (PG + 2 * c + 1))
        e("v_fma_f32 v120, v118, v120, v122")
        e("v_fma_f32 v121, v118, v121, v123")
    e.label("k1s_nocarry")
    e("v_add_u32 v83, %d, v82" % CARL_OFF)
    for q in range(16):
        e("ds_write_b64 v83, v[120:121] offset:%d" % (q * 640))
        if q < 15:
            e("v_fma_f32 v122, -v117, v121, v%d" % (AG + 2 * q))
            e("v_fma_f32 v123, v117, v120, v%d" % (AG + 2 * q + 1))
            e("v_fma_f32 v120, v116, v120, v122")
            e("v_fma_f32 v121, v116, v121, v123")
    e.label("k1s_nocomb")
    e("s_mov_b64 exec, s[48:49]")
    e("s_waitcnt lgkmcnt(0)")
    e("s_barrier")
    e("v_add_u32 v81, %d, v80" % CARL_OFF)
    for j in range(5):
        e("ds_read_b64 %s, v81 offset:%d" % (vr(HST + 2 * j, 2), j * 128))
    e("s_lshl_b32 s37, s%d, 7" % S_RB)
    e("s_lshl_b32 s38, s%d, 5" % S_W)
    e("s_add_u32 s37, s37, s38")
    e("v_lshlrev_b32 v82, 3, v4")
    e("v_add_u32 v82, s37, v82")
    e("s_movk_i32 s38, %d" % HP)
    e("v_mul_lo_u32 v82, v82, s38")
    e("s_mul_i32 s37, s%d, 320" % S_CB)
    e("s_add_u32 s37, s37, %d" % H_OFF)
    e("v_lshl_add_u32 v82, v3, 2, v82")
    e("v_add_u32 v82, s37, v82")
    for s in range(8):
        e("s_mov_b32 s%d, %d" % (S_ROWOFF + s, s * HP))
    e("s_waitcnt lgkmcnt(0)")
    OUT = 84
    for s in range(8):
        for j in range(5):
            hr, hi = HST + 2 * j, HST + 2 * j + 1
            ai = CST + 4 * j + 1
            t = TMP + 2 * j
            e("v_fma_f32 v%d, -v%d, v%d, v%d" % (t, ai, hi, ur(j, s)))
            e("v_fma_f32 v%d, v%d, v%d, v%d" % (t + 1, ai, hr, ui(j, s)))
        for j in range(5):
            hr, hi = HST + 2 * j, HST + 2 * j + 1
            ar = CST + 4 * j
            t = TMP + 2 * j
            e("v_fma_f32 v%d, v%d, v%d, v%d" % (hr, ar, hr, t))
            e("v_fma_f32 v%d, v%d, v%d, v%d" % (hi, ar, hi, t + 1))
        for j in range(5):
            hr, hi = HST + 2 * j, HST + 2 * j + 1
            cr, ci = CST + 4 * j + 2, CST + 4 * j + 3
            t = TMP + 2 * j
            e("v_mul_f32 v%d, v%d, v%d" % (t, cr, hr))
            e("v_mul_f32 v%d, -v%d, v%d" % (t + 1, cr, hi))
        for j in range(5):
            hr, hi = HST + 2 * j, HST + 2 * j + 1
            cr, ci = CST + 4 * j + 2, CST + 4 * j + 3
            t = TMP + 2 * j
            e("v_fma_f32 v%d, -v%d, v%d, v%d" % (t, ci, hi, t))
            e("v_fma_f32 v%d, -v%d, v%d, v%d" % (t + 1, ci, hr, t + 1))
        o = OUT + (s & 1) * 5
        for j in range(5):
            t = TMP + 2 * j
            e("v_cvt_pk_bf16_f32 v%d, v%d, v%d" % (o + j, t, t + 1))
        for j in range(5):
            e("buffer_store_dword v%d, v82, s[%d:%d], s%d offen offset:%d" % (o + j, S_WS, S_WS + 3, S_ROWOFF + s, 64 * j))
    e("s_endpgm")

    e.label("k1_ffn")
    VD = 10
    VA = 20
    VB = 28
    FR = 40
    ACC = 120
    e("s_lshl_b32 s37, s%d, 7" % S_RB)
    e("v_add_u32 v9, s37, v7")
    e("v_mul_lo_u32 v9, v9, s36")
    e("v_add_u32 v9, v9, v5")
    for i in range(4):
        e("v_add_u32 v%d, %d, v9" % (VD + i, XN_OFF + i * 32 * XP))
    e("s_mul_i32 s37, s%d, 192" % S_CB)
    e("v_add_u32 v9, s37, v8")
    e("v_mul_lo_u32 v9, v9, s36")
    e("v_add_u32 v9, v9, v5")
    for i in range(6):
        e("v_add_u32 v%d, %d, v9" % (VD + 4 + i, W1_OFF + (2 * P + i * 32) * XP))
    e("s_lshr_b32 s37, s%d, 1" % S_W)
    e("s_lshl_b32 s37, s37, 13")
    e("v_mov_b32 v36, s37")
    lds_read_addrs(e, VA, 36, F_BUF, 3)
    e("s_and_b32 s37, s%d, 1" % S_W)
    e("s_mul_i32 s37, s37, %d" % (96 * 128))
    e("s_add_u32 s37, s37, %d" % (128 * 128))
    e("v_mov_b32 v36, s37")
    lds_read_addrs(e, VB, 36, F_BUF, 3)

    main_loop(e, "k1f", 4, 6, F_BUF, 10,
              [[VA + ks * NBUF + b for b in range(NBUF)] for ks in range(2)],
              [[VB + ks * NBUF + b for b in range(NBUF)] for ks in range(2)],
              VD, FR, ACC, True)

    e("s_lshl_b32 s37, s%d, 7" % S_RB)
    e("s_lshr_b32 s38, s%d, 1" % S_W)
    e("s_lshl_b32 s38, s38, 6")
    e("s_add_u32 s37, s37, s38")
    e("v_add_u32 v40, s37, v3")
    e("s_movk_i32 s38, %d" % HP)
    e("v_mul_lo_u32 v40, v40, s38")
    e("s_mul_i32 s37, s%d, 384" % S_CB)
    e("s_and_b32 s38, s%d, 1" % S_W)
    e("s_mul_i32 s38, s38, 192")
    e("s_add_u32 s37, s37, s38")
    e("s_add_u32 s37, s37, %d" % (H_OFF + 2 * P * 2))
    e("v_lshl_add_u32 v40, v4, 4, v40")
    e("v_add_u32 v40, s37, v40")
    for a in range(4):
        e("s_mov_b32 s%d, %d" % (S_ROWOFF + a, a * 16 * HP))
    e("s_mov_b32 s48, 0xbfb8aa3b")
    e.nop(8)
    T = 44
    for a in range(4):
        for m in range(3):
            src = [ACC + (a * 6 + 2 * m) * 4 + r for r in range(4)] + [ACC + (a * 6 + 2 * m + 1) * 4 + r for r in range(4)]
            tb = T + ((a * 3 + m) & 1) * 24
            for k in range(4):
                e("v_cvt_pk_bf16_f32 v%d, v%d, v%d" % (tb + 16 + k, src[2 * k], src[2 * k + 1]))
            for k in range(4):
                e("v_lshlrev_b32 v%d, 16, v%d" % (tb + 2 * k, tb + 16 + k))
                e("v_and_b32 v%d, 0xffff0000, v%d" % (tb + 2 * k + 1, tb + 16 + k))
            for k in range(8):
                e("v_mul_f32 v%d, s48, v%d" % (tb + 8 + k, tb + k))
            for k in range(8):
                e("v_exp_f32 v%d, v%d" % (tb + 8 + k, tb + 8 + k))
            for k in range(8):
                e("v_add_f32 v%d, 1.0, v%d" % (tb + 8 + k, tb + 8 + k))
            for k in range(8):
                e("v_rcp_f32 v%d, v%d" % (tb + 8 + k, tb + 8 + k))
            for k in range(8):
                e("v_mul_f32 v%d, v%d, v%d" % (tb + k, tb + k, tb + 8 + k))
            for k in range(4):
                e("v_cvt_pk_bf16_f32 v%d, v%d, v%d" % (tb + 20 + k, tb + 2 * k, tb + 2 * k + 1))
            e("buffer_store_dwordx4 %s, v40, s[%d:%d], s%d offen offset:%d" % (vr(tb + 20, 4), S_WS, S_WS + 3, S_ROWOFF + a, 64 * m))
    e.label("k1_exit")
    e("s_endpgm")
```

```python
from gen import *

K2_LDS = 4 * 20 * 1024
PD = 4

S_WS = 8
S_X = 12
S_DSK = 16
S_OUT = 20
S_RB, S_CB, S_W = 30, 31, 32


def k2_loop(e, nsteps, VOA, VOB, FR, ACC):
    def slot(s):
        return FR + (s % PD) * 36

    def loads(s):
        out = []
        for a in range(5):
            out.append("buffer_load_dwordx4 %s, v%d, s[%d:%d], 0 offen offset:%d" % (vr(slot(s) + 4 * a, 4), VOA + a, S_WS, S_WS + 3, 64 * s))
        for b in range(4):
            out.append("buffer_load_dwordx4 %s, v%d, s[%d:%d], 0 offen offset:%d" % (vr(slot(s) + 20 + 4 * b, 4), VOB + b, S_WS, S_WS + 3, 64 * s))
        return out

    for s in range(PD - 1):
        for ins in loads(s):
            e(ins)
    for s in range(nsteps):
        nxt = loads(s + PD - 1) if s + PD - 1 < nsteps else []
        outstanding = 9 * (min(s + PD - 2, nsteps - 1) - s)
        e("s_waitcnt vmcnt(%d)" % outstanding)
        k = 0
        for a in range(5):
            for b in range(4):
                acc = ACC + (a * 4 + b) * 4
                c = "0" if s == 0 else vr(acc, 4)
                e("v_mfma_f32_16x16x32_bf16 %s, %s, %s, %s" % (vr(acc, 4), vr(slot(s) + 4 * a, 4), vr(slot(s) + 20 + 4 * b, 4), c))
                if k < len(nxt):
                    e(nxt[k])
                    k += 1


def gen_k2(e):
    kernel_begin(e, "k2_kernel")
    e("s_cmp_ge_u32 s2, 256")
    e("s_cbranch_scc1 k2_exit")
    e("s_load_dwordx2 s[34:35], s[0:1], 0")
    e("s_load_dwordx2 s[36:37], s[0:1], 64")
    e("s_load_dwordx2 s[38:39], s[0:1], 96")
    e("s_load_dwordx2 s[40:41], s[0:1], 112")
    e("s_waitcnt lgkmcnt(0)")
    srd(e, S_WS, 40, 41, WS_USED)
    srd(e, S_X, 34, 35, L * D * 2)
    srd(e, S_DSK, 36, 37, D * 2)
    srd(e, S_OUT, 38, 39, L * D * 4)
    e("s_and_b32 s34, s2, 7")
    e("s_lshl_b32 s34, s34, 2")
    e("s_lshr_b32 s35, s2, 3")
    e("s_and_b32 s35, s35, 3")
    e("s_add_u32 s%d, s34, s35" % S_RB)
    e("s_lshr_b32 s%d, s2, 5" % S_CB)
    e("v_lshrrev_b32 v1, 6, v0")
    e("s_nop 0")
    e("v_readfirstlane_b32 s%d, v1" % S_W)
    e("v_and_b32 v2, 63, v0")
    e("v_and_b32 v3, 15, v0")
    e("v_lshrrev_b32 v4, 4, v2")
    e("s_mul_i32 s34, s%d, 1280" % S_W)
    e("s_cmp_eq_u32 s%d, 3" % S_W)
    e("s_cselect_b32 s34, 4096, s34")
    VOA, VOB = 8, 13
    FR = 24
    ACC = 168
    e("s_movk_i32 s35, %d" % HP)
    e("s_mul_i32 s36, s%d, 80" % S_CB)
    e("v_add_u32 v5, s36, v3")
    e("v_mul_lo_u32 v5, v5, s35")
    e("v_lshl_add_u32 v5, v4, 4, v5")
    e("v_add_u32 v5, s34, v5")
    for a in range(5):
        e("v_add_u32 v%d, %d, v5" % (VOA + a, W2_OFF + a * 16 * HP))
    e("s_lshl_b32 s36, s%d, 6" % S_RB)
    e("v_add_u32 v5, s36, v3")
    e("v_mul_lo_u32 v5, v5, s35")
    e("v_lshl_add_u32 v5, v4, 4, v5")
    e("v_add_u32 v5, s34, v5")
    for b in range(4):
        e("v_add_u32 v%d, %d, v5" % (VOB + b, H_OFF + b * 16 * HP))
    e("s_cmp_ge_u32 s%d, 2" % S_W)
    e("s_cbranch_scc1 k2_ffn")
    k2_loop(e, 20, VOA, VOB, FR, ACC)
    e("s_branch k2_epi")
    e.label("k2_ffn")
    k2_loop(e, 24, VOA, VOB, FR, ACC)
    e.label("k2_epi")
    e("s_lshl_b32 s34, s%d, 6" % S_RB)
    e("s_lshl_b32 s35, s%d, 4" % S_W)
    e("s_add_u32 s34, s34, s35")
    e("v_add_u32 v5, s34, v3")
    e("s_mul_i32 s35, s%d, 80" % S_CB)
    e("v_lshlrev_b32 v6, 2, v4")
    e("v_add_u32 v6, s35, v6")
    e("s_movk_i32 s36, %d" % XP)
    e("v_mul_lo_u32 v7, v5, s36")
    e("v_lshl_add_u32 v7, v6, 1, v7")
    e("v_lshlrev_b32 v8, 1, v6")
    e("v_lshlrev_b32 v9, 1, v7")
    XR, XNR, DS = 24, 34, 44
    for a in range(5):
        e("buffer_load_dwordx2 %s, v7, s[%d:%d], 0 offen offset:%d" % (vr(XR + 2 * a, 2), S_X, S_X + 3, 32 * a))
        e("buffer_load_dwordx2 %s, v7, s[%d:%d], 0 offen offset:%d" % (vr(XNR + 2 * a, 2), S_WS, S_WS + 3, XN_OFF + 32 * a))
        e("buffer_load_dwordx2 %s, v8, s[%d:%d], 0 offen offset:%d" % (vr(DS + 2 * a, 2), S_DSK, S_DSK + 3, 32 * a))
    e("s_mul_i32 s34, s%d, 20480" % S_W)
    e("v_lshlrev_b32 v10, 4, v2")
    e("v_add_u32 v10, s34, v10")
    e.nop(4)
    for t in range(20):
        e("ds_write_b128 v10, %s offset:%d" % (vr(ACC + 4 * t, 4), t * 1024))
    e("s_waitcnt lgkmcnt(0)")
    e("s_barrier")
    e("s_lshl_b32 s34, s%d, 10" % S_W)
    e("v_lshlrev_b32 v10, 4, v2")
    e("v_add_u32 v10, s34, v10")
    e("v_add_u32 v11, 40960, v10")
    PR = 60
    for src in range(4):
        for a in range(5):
            e("ds_read_b128 %s, v%d offset:%d" % (vr(PR + (src * 5 + a) * 4, 4), 10 + (src >> 1), (src & 1) * 20480 + a * 4096))
    e("s_mov_b32 s34, 0xbfb8aa3b")
    e("s_waitcnt vmcnt(0) lgkmcnt(0)")
    for a in range(5):
        S = [PR + (0 * 5 + a) * 4 + r for r in range(4)]
        S1 = [PR + (1 * 5 + a) * 4 + r for r in range(4)]
        O = [PR + (2 * 5 + a) * 4 + r for r in range(4)]
        O1 = [PR + (3 * 5 + a) * 4 + r for r in range(4)]
        T = 140 + (a & 1) * 32
        for r in range(4):
            e("v_add_f32 v%d, v%d, v%d" % (S[r], S[r], S1[r]))
            e("v_add_f32 v%d, v%d, v%d" % (O[r], O[r], O1[r]))
        for (base, src) in ((0, XR), (4, XNR), (8, DS)):
            for k in range(2):
                e("v_lshlrev_b32 v%d, 16, v%d" % (T + base + 2 * k, src + 2 * a + k))
                e("v_and_b32 v%d, 0xffff0000, v%d" % (T + base + 2 * k + 1, src + 2 * a + k))
        for r in range(4):
            e("v_mul_f32 v%d, v%d, v%d" % (T + 4 + r, T + 4 + r, T + 8 + r))
        for k in range(2):
            e("v_cvt_pk_bf16_f32 v%d, v%d, v%d" % (T + 12 + k, T + 4 + 2 * k, T + 5 + 2 * k))
            e("v_cvt_pk_bf16_f32 v%d, v%d, v%d" % (T + 14 + k, O[2 * k], O[2 * k + 1]))
        for k in range(2):
            e("v_lshlrev_b32 v%d, 16, v%d" % (T + 4 + 2 * k, T + 12 + k))
            e("v_and_b32 v%d, 0xffff0000, v%d" % (T + 5 + 2 * k, T + 12 + k))
            e("v_lshlrev_b32 v%d, 16, v%d" % (T + 8 + 2 * k, T + 14 + k))
            e("v_and_b32 v%d, 0xffff0000, v%d" % (T + 9 + 2 * k, T + 14 + k))
        for r in range(4):
            e("v_add_f32 v%d, v%d, v%d" % (S[r], S[r], T + 4 + r))
            e("v_mul_f32 v%d, s34, v%d" % (T + 16 + r, T + 8 + r))
        for r in range(4):
            e("v_exp_f32 v%d, v%d" % (T + 16 + r, T + 16 + r))
        for r in range(4):
            e("v_add_f32 v%d, 1.0, v%d" % (T + 16 + r, T + 16 + r))
        for r in range(4):
            e("v_rcp_f32 v%d, v%d" % (T + 16 + r, T + 16 + r))
        for r in range(4):
            e("v_mul_f32 v%d, v%d, v%d" % (T + 8 + r, T + 8 + r, T + 16 + r))
        for k in range(2):
            e("v_cvt_pk_bf16_f32 v%d, v%d, v%d" % (T + 12 + k, T + 8 + 2 * k, T + 9 + 2 * k))
        for k in range(2):
            e("v_lshlrev_b32 v%d, 16, v%d" % (T + 8 + 2 * k, T + 12 + k))
            e("v_and_b32 v%d, 0xffff0000, v%d" % (T + 9 + 2 * k, T + 12 + k))
        for r in range(4):
            e("v_mul_f32 v%d, v%d, v%d" % (T + 20 + r, S[r], T + 8 + r))
        for r in range(4):
            e("v_add_f32 v%d, v%d, v%d" % (T + 20 + r, T + r, T + 20 + r))
        e("buffer_store_dwordx4 %s, v9, s[%d:%d], 0 offen offset:%d" % (vr(T + 20, 4), S_OUT, S_OUT + 3, 64 * a))
    e.label("k2_exit")
    e("s_endpgm")
```

```python
import sys

NAME = "recurrent_scan__ssm_conv_s5__dense_activation_silu__prompt"
L, D, P, F = 2048, 640, 640, 1536
KK = 2 * P + F

XN_OFF = 0
W1_OFF = XN_OFF + L * D * 2
W2_OFF = W1_OFF + KK * D * 2
H_OFF = W2_OFF + D * KK * 2
AGG_OFF = H_OFF + L * KK * 2
WS_USED = AGG_OFF + 16 * P * 8
HP = KK * 2
XP = D * 2

HEADER = open("cdna_kernels/%s.s.ref" % NAME).read().split("; Override launch geometry")[0]


class Em:
    def __init__(self):
        self.lines = []

    def __call__(self, s):
        self.lines.append("    " + s)

    def label(self, s):
        self.lines.append(s + ":")

    def raw(self, s):
        self.lines.append(s)

    def nop(self, n):
        while n > 0:
            k = min(n, 16)
            self("s_nop %d" % (k - 1))
            n -= k

    def text(self):
        return "\n".join(self.lines) + "\n"


def vr(a, n):
    return "v[%d:%d]" % (a, a + n - 1)


def sr(a, n):
    return "s[%d:%d]" % (a, a + n - 1)


def srd(e, dst, lo, hi, size):
    e("s_mov_b32 s%d, s%d" % (dst, lo))
    e("s_and_b32 s%d, s%d, 0xffff" % (dst + 1, hi))
    e("s_mov_b32 s%d, %d" % (dst + 2, size))
    e("s_mov_b32 s%d, 0x00020000" % (dst + 3))


def kernel_begin(e, name):
    e.raw(".globl %s" % name)
    e.raw(".p2align 8")
    e.raw(".type %s,@function" % name)
    e.label(name)


def kernel_desc(e, name, vgpr=256, sgpr=102):
    e.raw(".p2align 6")
    e.raw(".amdhsa_kernel %s" % name)
    e.raw("  .amdhsa_next_free_vgpr %d" % vgpr)
    e.raw("  .amdhsa_next_free_sgpr %d" % sgpr)
    e.raw("  .amdhsa_accum_offset %d" % (((vgpr + 3) // 4) * 4))
    e.raw("  .amdhsa_group_segment_fixed_size 0")
    e.raw("  .amdhsa_kernarg_size 120")
    e.raw("  .amdhsa_user_sgpr_count 2")
    e.raw("  .amdhsa_user_sgpr_kernarg_segment_ptr 1")
    e.raw("  .amdhsa_system_sgpr_workgroup_id_x 1")
    e.raw("  .amdhsa_float_denorm_mode_32 3")
    e.raw(".end_amdhsa_kernel")


def dpp_allreduce16(e, v, t):
    for mod in ("quad_perm:[1,0,3,2]", "quad_perm:[2,3,0,1]", "row_half_mirror", "row_mirror"):
        e.nop(2)
        e("v_add_f32_dpp v%d, v%d, v%d %s row_mask:0xf bank_mask:0xf" % (t, v, v, mod))
        e("v_mov_b32 v%d, v%d" % (v, t))


def rne_bf16(e, dst, src):
    e("v_cvt_pk_bf16_f32 v%d, v%d, v%d" % (dst, src, src))
    e("v_lshlrev_b32 v%d, 16, v%d" % (dst, dst))


K0_LN = 128
K0_CPB = 80
K0_TW1 = 240
K0_ILC = 40
K0_TW2 = 240
K0_TOTAL = K0_LN + K0_CPB + K0_TW1 + K0_ILC + K0_TW2


def gen_k0(e):
    kernel_begin(e, "k0_kernel")
    e("s_load_dwordx2 s[20:21], s[0:1], 0")
    e("s_load_dwordx4 s[24:27], s[0:1], 24")
    e("s_load_dwordx4 s[28:31], s[0:1], 40")
    e("s_load_dwordx4 s[32:35], s[0:1], 80")
    e("s_load_dwordx2 s[36:37], s[0:1], 112")
    e("s_waitcnt lgkmcnt(0)")
    srd(e, 8, 36, 37, WS_USED)
    e("s_cmp_lt_u32 s2, %d" % K0_LN)
    e("s_cbranch_scc1 k0_ln")
    e("s_cmp_lt_u32 s2, %d" % (K0_LN + K0_CPB))
    e("s_cbranch_scc1 k0_cpb")
    e("s_cmp_lt_u32 s2, %d" % (K0_LN + K0_CPB + K0_TW1))
    e("s_cbranch_scc1 k0_tw1")
    e("s_cmp_lt_u32 s2, %d" % (K0_LN + K0_CPB + K0_TW1 + K0_ILC))
    e("s_cbranch_scc1 k0_ilc")
    e("s_cmp_lt_u32 s2, %d" % K0_TOTAL)
    e("s_cbranch_scc1 k0_tw2")
    e("s_endpgm")

    e.label("k0_ln")
    srd(e, 12, 20, 21, L * D * 2)
    e("v_lshrrev_b32 v1, 4, v0")
    e("v_and_b32 v2, 15, v0")
    e("s_lshl_b32 s3, s2, 4")
    e("v_add_u32 v1, s3, v1")
    e("s_movk_i32 s4, %d" % XP)
    e("v_mul_lo_u32 v1, v1, s4")
    e("v_lshl_add_u32 v1, v2, 4, v1")
    for i in range(5):
        e("buffer_load_dwordx4 %s, v1, s[12:15], 0 offen offset:%d" % (vr(8 + 4 * i, 4), 256 * i))
    e("s_waitcnt vmcnt(0)")
    X = 32
    for i in range(20):
        e("v_lshlrev_b32 v%d, 16, v%d" % (X + 2 * i, 8 + i))
        e("v_and_b32 v%d, 0xffff0000, v%d" % (X + 2 * i + 1, 8 + i))
    for a in range(4):
        e("v_add_f32 v%d, v%d, v%d" % (80 + a, X + a, X + 4 + a))
    for i in range(2, 10):
        for a in range(4):
            e("v_add_f32 v%d, v%d, v%d" % (80 + a, 80 + a, X + 4 * i + a))
    e("v_add_f32 v80, v80, v81")
    e("v_add_f32 v82, v82, v83")
    e("v_add_f32 v80, v80, v82")
    dpp_allreduce16(e, 80, 81)
    e("s_mov_b32 s5, 0x3acccccd")
    e("s_mov_b32 s6, 0x44200000")
    e("v_mul_f32 v84, s5, v80")
    e("v_fma_f32 v85, -v84, s6, v80")
    e("v_fma_f32 v84, v85, s5, v84")
    for a in range(4):
        e("v_sub_f32 v%d, v%d, v84" % (86 + a, X + a))
        e("v_mul_f32 v%d, v%d, v%d" % (80 + a, 86 + a, 86 + a))
    for i in range(1, 10):
        for a in range(4):
            e("v_sub_f32 v%d, v%d, v84" % (86 + a, X + 4 * i + a))
            e("v_fma_f32 v%d, v%d, v%d, v%d" % (80 + a, 86 + a, 86 + a, 80 + a))
    e("v_add_f32 v80, v80, v81")
    e("v_add_f32 v82, v82, v83")
    e("v_add_f32 v80, v80, v82")
    dpp_allreduce16(e, 80, 81)
    e("v_mul_f32 v85, s5, v80")
    e("v_fma_f32 v86, -v85, s6, v80")
    e("v_fma_f32 v85, v86, s5, v85")
    rne_bf16(e, 84, 84)
    rne_bf16(e, 85, 85)
    e("v_add_f32 v85, 0x3727c5ac, v85")
    rne_bf16(e, 85, 85)
    e("v_sqrt_f32 v85, v85")
    e.nop(1)
    rne_bf16(e, 85, 85)
    e("v_rcp_f32 v86, v85")
    e.nop(1)
    for i in range(20):
        a, b = X + 2 * i, X + 2 * i + 1
        e("v_sub_f32 v%d, v%d, v84" % (a, a))
        e("v_sub_f32 v%d, v%d, v84" % (b, b))
        e("v_cvt_pk_bf16_f32 v90, v%d, v%d" % (a, b))
        e("v_lshlrev_b32 v%d, 16, v90" % a)
        e("v_and_b32 v%d, 0xffff0000, v90" % b)
        e("v_mul_f32 v91, v%d, v86" % a)
        e("v_mul_f32 v92, v%d, v86" % b)
        e("v_fma_f32 v93, -v91, v85, v%d" % a)
        e("v_fma_f32 v94, -v92, v85, v%d" % b)
        e("v_fma_f32 v91, v93, v86, v91")
        e("v_fma_f32 v92, v94, v86, v92")
        e("v_cvt_pk_bf16_f32 v%d, v91, v92" % (8 + i))
    for i in range(5):
        e("buffer_store_dwordx4 %s, v1, s[8:11], 0 offen offset:%d" % (vr(8 + 4 * i, 4), 256 * i))
    e("s_endpgm")

    e.label("k0_cpb")
    e("s_sub_u32 s3, s2, %d" % K0_LN)
    e("s_mov_b32 s4, 0x1999999a")
    e("s_mul_hi_u32 s5, s3, s4")
    e("s_mul_i32 s6, s5, 10")
    e("s_sub_u32 s6, s3, s6")
    e("s_cmp_ge_u32 s6, 5")
    e("s_cselect_b32 s12, s26, s24")
    e("s_cselect_b32 s13, s27, s25")
    e("s_cselect_b32 s7, 5, 0")
    e("s_and_b32 s13, s13, 0xffff")
    e("s_mov_b32 s14, %d" % (P * D * 2))
    e("s_mov_b32 s15, 0x00020000")
    e("s_sub_u32 s6, s6, s7")
    e("s_mul_i32 s5, s5, 80")
    e("s_lshl_b32 s6, s6, 4")
    e("s_add_u32 s5, s5, s6")
    e("v_lshrrev_b32 v1, 4, v0")
    e("v_and_b32 v2, 15, v0")
    e("s_movk_i32 s4, %d" % XP)
    e("v_add_u32 v3, s5, v1")
    e("v_mul_lo_u32 v3, v3, s4")
    e("v_lshl_add_u32 v3, v2, 4, v3")
    e("s_lshl_b32 s6, s3, 4")
    e("v_add_u32 v4, s6, v1")
    e("v_mul_lo_u32 v4, v4, s4")
    e("v_lshl_add_u32 v4, v2, 4, v4")
    e("v_add_u32 v4, %d, v4" % W1_OFF)
    for i in range(5):
        e("buffer_load_dwordx4 %s, v3, s[12:15], 0 offen offset:%d" % (vr(8 + 4 * i, 4), 256 * i))
    e("s_waitcnt vmcnt(0)")
    for i in range(5):
        e("buffer_store_dwordx4 %s, v4, s[8:11], 0 offen offset:%d" % (vr(8 + 4 * i, 4), 256 * i))
    e("s_endpgm")

    e.label("k0_tw1")
    e("s_sub_u32 s3, s2, %d" % (K0_LN + K0_CPB))
    srd(e, 12, 32, 33, D * F * 2)
    e("s_mov_b32 s16, 0xaaaaaab")
    e("s_mul_hi_u32 s17, s3, s16")
    e("s_mul_i32 s18, s17, 24")
    e("s_sub_u32 s18, s3, s18")
    e("s_movk_i32 s4, %d" % (F * 2))
    e("s_movk_i32 s5, %d" % XP)
    e("s_mul_i32 s6, s17, %d" % (64 * F * 2))
    e("s_lshl_b32 s19, s18, 7")
    e("s_add_u32 s6, s6, s19")
    e("s_mul_i32 s7, s18, %d" % (64 * XP))
    e("s_lshl_b32 s19, s17, 7")
    e("s_add_u32 s7, s7, s19")
    e("s_add_u32 s7, s7, %d" % (W1_OFF + 2 * P * XP))
    e("s_branch k0_tr")
    e.label("k0_tw2")
    e("s_sub_u32 s3, s2, %d" % (K0_LN + K0_CPB + K0_TW1 + K0_ILC))
    srd(e, 12, 34, 35, D * F * 2)
    e("s_mov_b32 s16, 0x1999999a")
    e("s_mul_hi_u32 s17, s3, s16")
    e("s_mul_i32 s18, s17, 10")
    e("s_sub_u32 s18, s3, s18")
    e("s_movk_i32 s4, %d" % XP)
    e("s_movk_i32 s5, %d" % HP)
    e("s_mul_i32 s6, s17, %d" % (64 * XP))
    e("s_lshl_b32 s19, s18, 7")
    e("s_add_u32 s6, s6, s19")
    e("s_mul_i32 s7, s18, %d" % (64 * HP))
    e("s_lshl_b32 s19, s17, 7")
    e("s_add_u32 s7, s7, s19")
    e("s_add_u32 s7, s7, %d" % (W2_OFF + 2 * P * 2))
    e.label("k0_tr")
    e("v_lshrrev_b32 v1, 2, v0")
    e("v_and_b32 v2, 3, v0")
    e("v_mul_lo_u32 v3, v1, s4")
    e("v_lshl_add_u32 v3, v2, 5, v3")
    e("v_add_u32 v3, s6, v3")
    e("buffer_load_dwordx4 v[8:11], v3, s[12:15], 0 offen")
    e("buffer_load_dwordx4 v[12:15], v3, s[12:15], 0 offen offset:16")
    e("v_mul_u32_u24 v4, 144, v1")
    e("v_lshl_add_u32 v4, v2, 5, v4")
    e("s_waitcnt vmcnt(0)")
    e("ds_write_b128 v4, v[8:11]")
    e("ds_write_b128 v4, v[12:15] offset:16")
    e("s_waitcnt lgkmcnt(0)")
    e("s_barrier")
    e("v_mul_u32_u24 v5, %d, v2" % (144 * 16))
    e("v_lshl_add_u32 v5, v1, 1, v5")
    for k in range(16):
        e("ds_read_u16 v%d, v5 offset:%d" % (24 + k, 144 * k))
    e("v_mul_lo_u32 v6, v1, s5")
    e("v_lshl_add_u32 v6, v2, 5, v6")
    e("v_add_u32 v6, s7, v6")
    e("s_waitcnt lgkmcnt(0)")
    for k in range(8):
        e("v_lshl_or_b32 v%d, v%d, 16, v%d" % (16 + k, 25 + 2 * k, 24 + 2 * k))
    e("buffer_store_dwordx4 v[16:19], v6, s[8:11], 0 offen")
    e("buffer_store_dwordx4 v[20:23], v6, s[8:11], 0 offen offset:16")
    e("s_endpgm")

    e.label("k0_ilc")
    e("s_sub_u32 s3, s2, %d" % (K0_LN + K0_CPB + K0_TW1))
    srd(e, 12, 28, 29, P * D * 2)
    srd(e, 16, 30, 31, P * D * 2)
    e("v_lshrrev_b32 v1, 4, v0")
    e("v_and_b32 v2, 15, v0")
    e("s_lshl_b32 s4, s3, 4")
    e("v_add_u32 v1, s4, v1")
    e("s_movk_i32 s5, %d" % XP)
    e("s_movk_i32 s6, %d" % HP)
    e("v_mul_lo_u32 v3, v1, s5")
    e("v_lshl_add_u32 v3, v2, 4, v3")
    e("v_mul_lo_u32 v4, v1, s6")
    e("v_lshl_add_u32 v4, v2, 5, v4")
    e("v_add_u32 v4, %d, v4" % W2_OFF)
    for i in range(5):
        e("buffer_load_dwordx4 %s, v3, s[12:15], 0 offen offset:%d" % (vr(8 + 8 * i, 4), 256 * i))
        e("buffer_load_dwordx4 %s, v3, s[16:19], 0 offen offset:%d" % (vr(12 + 8 * i, 4), 256 * i))
    e("s_mov_b32 s7, 0x05040100")
    e("s_mov_b32 s3, 0x07060302")
    e("s_waitcnt vmcnt(0)")
    for i in range(5):
        for k in range(4):
            re, im = 8 + 8 * i + k, 12 + 8 * i + k
            e("v_perm_b32 v%d, v%d, v%d, s7" % (48 + 8 * i + 2 * k, im, re))
            e("v_perm_b32 v%d, v%d, v%d, s3" % (48 + 8 * i + 2 * k + 1, im, re))
    for i in range(5):
        e("buffer_store_dwordx4 %s, v4, s[8:11], 0 offen offset:%d" % (vr(48 + 8 * i, 4), 512 * i))
        e("buffer_store_dwordx4 %s, v4, s[8:11], 0 offen offset:%d" % (vr(52 + 8 * i, 4), 512 * i + 16))
    e("s_endpgm")


def main():
    from gen_k1 import gen_k1, K1_LDS
    from gen_k2 import gen_k2, K2_LDS
    e = Em()
    e.raw(HEADER.rstrip("\n"))
    e.raw("; @launch kernel=k0_kernel grid=(%d,1,1) block=(256,1,1) lds=9216" % K0_TOTAL)
    e.raw("; @launch kernel=k1_kernel grid=(256,1,1) block=(256,1,1) lds=%d" % K1_LDS)
    e.raw("; @launch kernel=k2_kernel grid=(256,1,1) block=(256,1,1) lds=%d" % K2_LDS)
    e.raw('.amdgcn_target "amdgcn-amd-amdhsa--gfx950"')
    e.raw(".text")
    gen_k0(e)
    gen_k1(e)
    gen_k2(e)
    e.raw('.section .rodata,"a"')
    kernel_desc(e, "k0_kernel", vgpr=96, sgpr=48)
    kernel_desc(e, "k1_kernel", vgpr=256, sgpr=102)
    kernel_desc(e, "k2_kernel", vgpr=256, sgpr=64)
    out = sys.argv[1] if len(sys.argv) > 1 else "cdna_kernels/%s.s" % NAME
    open(out, "w").write(e.text())
    print("wrote", out, len(e.text()), "bytes")


if __name__ == "__main__":
    main()
```

```python
from gen import *
import os

NBUF = 4
NSTAGE = 10
S_BUF = 288 * 128
F_BUF = 320 * 128
K1_LDS = NBUF * F_BUF
TBL_OFF = NBUF * S_BUF
AGGL_OFF = 2 * S_BUF
CARL_OFF = AGGL_OFF + 16 * 80 * 8
SOP = 336
OUTL_OFF = 3 * S_BUF
FOP = 208
FOUT_OFF = 2 * F_BUF

S_WS = 8
S_BRE, S_BIM, S_B6 = 12, 16, 20
S_LRE, S_LIM, S_LDT = 24, 56, 60
S_W1 = 12
S_CB, S_RB, S_W = 30, 31, 32
S_K, S_K2 = 33, 35
S_T0 = 34
S_ROWOFF = 40
LOG2E = 0x3FB8AA3B
INV2PI = 0x3E22F983


def main_loop(e, bufsz, nslot, vD, slot_srd, slot_soff, reads, nacc_a, nacc_b, fragA, fragB, ACC, swap, hook):
    def dma(s):
        buf = s % NBUF
        out = [["s_movk_i32 s%d, %d" % (S_K, 128 * s), "s_mov_b32 s%d, %d" % (S_K2, 64 * F * 2 * s)]]
        for i in range(nslot):
            out.append(["s_add_u32 m0, s%d, %d" % (S_T0, buf * bufsz + i * 4096),
                        "s_nop 0",
                        "buffer_load_dwordx4 v%d, s[%d:%d], s%d offen lds" % (vD + i, slot_srd[i], slot_srd[i] + 3, slot_soff[i])])
        return out

    def mfmas(setid, first):
        out = []
        for i in range(nacc_a):
            for j in range(nacc_b):
                acc = ACC + (i * nacc_b + j) * 4
                a, b = fragA(setid, i), fragB(setid, j)
                if swap:
                    a, b = b, a
                c = "0" if first else vr(acc, 4)
                out.append("v_mfma_f32_16x16x32_bf16 %s, %s, %s, %s" % (vr(acc, 4), vr(a, 4), vr(b, 4), c))
        return out

    def interleave(mf, extra):
        k = 0
        for m in mf:
            e(m)
            if k < len(extra):
                for ins in extra[k]:
                    e(ins)
                k += 1
        while k < len(extra):
            for ins in extra[k]:
                e(ins)
            k += 1

    e("s_lshl_b32 s%d, s%d, 10" % (S_T0, S_W))
    for s in range(3):
        for g in dma(s):
            for ins in g:
                e(ins)
    hook()
    e("s_waitcnt vmcnt(%d)" % (2 * nslot))
    e("s_barrier")
    ts_stamp(e, 1, 1, S_WS)
    for r in reads(0, 0, 0):
        e(r)
    for s in range(NSTAGE):
        e("s_waitcnt lgkmcnt(0)")
        interleave(mfmas(0, s == 0), [[r] for r in reads(s, 1, 1)])
        extra = []
        if s + 1 < NSTAGE:
            e("s_waitcnt vmcnt(%d)" % (nslot if s + 2 < NSTAGE else 0))
            e("s_barrier")
            extra = [[r] for r in reads(s + 1, 0, 0)]
            if s + 3 < NSTAGE:
                d = dma(s + 3)
                merged = []
                for idx in range(max(len(extra), len(d))):
                    g = []
                    if idx < len(extra):
                        g += extra[idx]
                    if idx < len(d):
                        g += d[idx]
                    merged.append(g)
                extra = merged
        e("s_waitcnt lgkmcnt(0)")
        interleave(mfmas(1, False), extra)
        ts_stamp(e, 2 + s, 1, S_WS)


def lds_read_addrs(e, base_v, rowbase_v, bufsz):
    for ks in range(2):
        e("v_lshrrev_b32 v5, 1, v3")
        e("v_or_b32 v6, %d, v4" % (4 * ks))
        e("v_xor_b32 v5, v5, v6")
        e("v_lshlrev_b32 v5, 4, v5")
        e("v_lshl_add_u32 v5, v3, 7, v5")
        e("v_add_u32 v5, v5, v%d" % rowbase_v)
        for b in range(NBUF):
            e("v_add_u32 v%d, %d, v5" % (base_v + ks * NBUF + b, b * bufsz))


def cmul(e, dr, di, ar, ai, br, bi, t):
    e("v_mul_f32 v%d, v%d, v%d" % (t, ar, br))
    e("v_mul_f32 v%d, v%d, v%d" % (t + 1, ar, bi))
    e("v_fma_f32 v%d, -v%d, v%d, v%d" % (t, ai, bi, t))
    e("v_fma_f32 v%d, v%d, v%d, v%d" % (t + 1, ai, br, t + 1))
    e("v_mov_b32 v%d, v%d" % (dr, t))
    e("v_mov_b32 v%d, v%d" % (di, t + 1))


def gen_k1(e):
    kernel_begin(e, "k1_kernel")
    e("s_cmp_ge_u32 s2, 256")
    e("s_cbranch_scc1 k1_exit")
    e("s_load_dwordx8 s[64:71], s[0:1], 8")
    e("s_load_dwordx2 s[76:77], s[0:1], 56")
    e("s_load_dwordx2 s[78:79], s[0:1], 80")
    e("s_load_dwordx2 s[80:81], s[0:1], 112")
    e("v_lshrrev_b32 v1, 6, v0")
    e("v_and_b32 v2, 63, v0")
    e("v_readfirstlane_b32 s%d, v1" % S_W)
    e("v_and_b32 v3, 15, v0")
    e("v_lshrrev_b32 v4, 4, v2")
    e("s_and_b32 s%d, s2, 7" % S_CB)
    e("s_lshr_b32 s%d, s2, 4" % S_RB)
    e("s_and_b32 s34, s%d, 1" % S_W)
    e("s_lshl_b32 s35, s34, 2")
    e("v_add_u32 v5, s35, v4")
    e("v_and_b32 v5, 7, v5")
    e("v_and_b32 v6, 7, v2")
    e("v_xor_b32 v5, v5, v6")
    e("v_lshlrev_b32 v5, 4, v5")
    e("v_lshrrev_b32 v6, 3, v2")
    e("s_lshl_b32 s35, s%d, 3" % S_W)
    e("v_add_u32 v7, s35, v6")
    e("v_lshrrev_b32 v8, 5, v2")
    e("s_lshl_b32 s35, s34, 1")
    e("v_add_u32 v8, s35, v8")
    e("v_lshlrev_b32 v8, 3, v8")
    e("v_and_b32 v9, 3, v6")
    e("v_add_u32 v8, v8, v9")
    e("s_lshr_b32 s35, s%d, 1" % S_W)
    e("s_lshl_b32 s35, s35, 2")
    e("v_add_u32 v8, s35, v8")
    e("s_movk_i32 s36, %d" % XW)
    e("s_waitcnt lgkmcnt(0)")
    srd(e, S_WS, 80, 81, WS_USED)
    ts_stamp(e, 0, 1, S_WS)
    e("s_bitcmp1_b32 s2, 3")
    e("s_cbranch_scc1 k1_ffn")

    VD = 10
    VA = 20
    VB = 28
    FR = 40
    ACC = 136
    e("s_lshl_b32 s37, s%d, 7" % S_RB)
    e("v_add_u32 v9, s37, v8")
    e("v_mul_lo_u32 v9, v9, s36")
    e("v_add_u32 v9, v9, v5")
    for i in range(4):
        e("v_add_u32 v%d, %d, v9" % (VD + i, XN_OFF + i * 32 * XW))
    srd(e, S_BRE, 68, 69, P * D * 2)
    srd(e, S_BIM, 70, 71, P * D * 2)
    srd(e, S_LRE, 64, 65, P * 2)
    srd(e, S_LIM, 66, 67, P * 2)
    srd(e, S_LDT, 76, 77, P * 2)
    e("s_cmp_ge_u32 s%d, 2" % S_W)
    e("s_cselect_b32 s%d, s70, s68" % S_B6)
    e("s_cselect_b32 s%d, s71, s69" % (S_B6 + 1))
    e("s_cselect_b32 s38, %d, 0" % (80 * XP))
    e("s_and_b32 s%d, s%d, 0xffff" % (S_B6 + 1, S_B6 + 1))
    e("s_mov_b32 s%d, %d" % (S_B6 + 2, P * D * 2))
    e("s_mov_b32 s%d, 0x00020000" % (S_B6 + 3))
    e("s_mul_i32 s37, s%d, 80" % S_CB)
    e("v_add_u32 v9, s37, v7")
    e("s_movk_i32 s37, %d" % XP)
    e("v_mul_lo_u32 v9, v9, s37")
    e("v_add_u32 v9, v9, v5")
    e("v_mov_b32 v%d, v9" % (VD + 4))
    e("v_add_u32 v%d, %d, v9" % (VD + 5, 32 * XP))
    e("v_add_u32 v%d, %d, v9" % (VD + 6, 64 * XP))
    e("v_subrev_u32 v%d, s38, v%d" % (VD + 6, VD + 6))
    e("v_add_u32 v%d, %d, v9" % (VD + 7, (96 - 80) * XP))
    e("v_add_u32 v%d, %d, v9" % (VD + 8, (128 - 80) * XP))
    e("s_mul_i32 s37, s%d, 80" % S_CB)
    e("v_add_u32 v9, s37, v0")
    e("v_lshlrev_b32 v9, 1, v9")
    e("buffer_load_ushort v40, v9, s[%d:%d], 0 offen" % (S_LRE, S_LRE + 3))
    e("buffer_load_ushort v41, v9, s[%d:%d], 0 offen" % (S_LIM, S_LIM + 3))
    e("buffer_load_ushort v42, v9, s[%d:%d], 0 offen" % (S_LDT, S_LDT + 3))

    def ssm_hook():
        e("s_lshl_b32 s37, s%d, 12" % S_W)
        e("v_mov_b32 v36, s37")
        lds_read_addrs(e, VA, 36, S_BUF)
        e("v_mov_b32 v36, %d" % (128 * 128))
        lds_read_addrs(e, VB, 36, S_BUF)
        e("s_waitcnt vmcnt(27)")
        e("v_lshlrev_b32 v40, 16, v40")
        e("v_lshlrev_b32 v41, 16, v41")
        e("v_lshlrev_b32 v42, 16, v42")
        e("s_mov_b32 s37, 0x%x" % LOG2E)
        e("s_mov_b32 s38, 0x%x" % INV2PI)
        e("v_mul_f32 v42, s37, v42")
        e("v_exp_f32 v42, v42")
        e.nop(1)
        rne_bf16(e, 42, 42)
        e("v_mul_f32 v43, v42, v40")
        e("v_mul_f32 v44, v42, v41")
        e("v_mul_f32 v43, s37, v43")
        e("v_exp_f32 v43, v43")
        e("v_mul_f32 v44, s38, v44")
        e("v_rndne_f32 v45, v44")
        e("v_sub_f32 v44, v44, v45")
        e("v_sin_f32 v45, v44")
        e("v_cos_f32 v46, v44")
        e.nop(1)
        e("v_mul_f32 v48, v43, v46")
        e("v_mul_f32 v49, v43, v45")
        e("v_add_f32 v45, -1.0, v48")
        e("v_mul_f32 v46, v40, v40")
        e("v_fma_f32 v46, v41, v41, v46")
        e("v_rcp_f32 v47, v46")
        e("v_mul_f32 v50, v45, v40")
        e("v_fma_f32 v50, v49, v41, v50")
        e("v_mul_f32 v51, v49, v40")
        e("v_fma_f32 v51, -v45, v41, v51")
        e("v_add_f32 v47, v47, v47")
        e("v_mul_f32 v50, v50, v47")
        e("v_mul_f32 v51, v51, v47")
        e("v_mov_b32 v52, v48")
        e("v_mov_b32 v53, v49")
        for _ in range(3):
            cmul(e, 52, 53, 52, 53, 52, 53, 56)
        e("v_mov_b32 v54, v52")
        e("v_mov_b32 v55, v53")
        for _ in range(4):
            cmul(e, 54, 55, 54, 55, 54, 55, 56)
        e("v_lshlrev_b32 v9, 5, v0")
        e("v_add_u32 v9, %d, v9" % TBL_OFF)
        e("ds_write_b128 v9, v[48:51]")
        e("ds_write_b128 v9, v[52:55] offset:16")
        e("s_waitcnt lgkmcnt(0)")

    def s_frag(setid, i):
        return FR + (setid * 12 + i) * 4

    def s_reads(s, ks, setid):
        buf = s % NBUF
        out = []
        for i in range(2):
            out.append("ds_read_b128 %s, v%d offset:%d" % (vr(s_frag(setid, i), 4), VA + ks * NBUF + buf, i * 2048))
        for j in range(10):
            out.append("ds_read_b128 %s, v%d offset:%d" % (vr(s_frag(setid, 2 + j), 4), VB + ks * NBUF + buf, j * 2048))
        return out

    main_loop(e, S_BUF, 9, VD, [S_WS] * 4 + [S_BRE, S_BRE, S_B6, S_BIM, S_BIM], [S_K] * 9,
              s_reads, 2, 10, s_frag, lambda st, j: s_frag(st, 2 + j), ACC, False, ssm_hook)

    def ur(j, s):
        return ACC + ((s >> 2) * 10 + j) * 4 + (s & 3)

    def ui(j, s):
        return ACC + ((s >> 2) * 10 + 5 + j) * 4 + (s & 3)

    CST = 40
    HST = 60
    TMP = 70
    e("v_lshlrev_b32 v9, 5, v3")
    e("v_add_u32 v9, %d, v9" % TBL_OFF)
    for j in range(5):
        e("ds_read_b128 %s, v9 offset:%d" % (vr(CST + 4 * j, 4), j * 512))
    e.nop(8)
    e("s_waitcnt lgkmcnt(0)")
    for j in range(5):
        e("v_mov_b32 v%d, v%d" % (HST + 2 * j, ur(j, 0)))
        e("v_mov_b32 v%d, v%d" % (HST + 2 * j + 1, ui(j, 0)))
    for s in range(1, 8):
        for j in range(5):
            hr, hi = HST + 2 * j, HST + 2 * j + 1
            ai = CST + 4 * j + 1
            t = TMP + 2 * j
            e("v_fma_f32 v%d, -v%d, v%d, v%d" % (t, ai, hi, ur(j, s)))
            e("v_fma_f32 v%d, v%d, v%d, v%d" % (t + 1, ai, hr, ui(j, s)))
        for j in range(5):
            hr, hi = HST + 2 * j, HST + 2 * j + 1
            ar = CST + 4 * j
            t = TMP + 2 * j
            e("v_fma_f32 v%d, v%d, v%d, v%d" % (hr, ar, hr, t))
            e("v_fma_f32 v%d, v%d, v%d, v%d" % (hi, ar, hi, t + 1))
    e("s_lshl_b32 s37, s%d, 2" % S_W)
    e("v_add_u32 v80, s37, v4")
    e("v_mul_u32_u24 v80, 80, v80")
    e("v_add_u32 v80, v80, v3")
    e("v_lshlrev_b32 v80, 3, v80")
    e("v_add_u32 v81, %d, v80" % AGGL_OFF)
    for j in range(5):
        e("ds_write_b64 v81, %s offset:%d" % (vr(HST + 2 * j, 2), j * 128))
    e("s_waitcnt lgkmcnt(0)")
    e("s_barrier")
    ts_stamp(e, 12, 1, S_WS)
    e("v_cmp_gt_u32 vcc, 80, v0")
    e("s_and_saveexec_b64 s[48:49], vcc")
    e("s_cbranch_execz k1s_nocomb")
    AG = 84
    e("v_lshlrev_b32 v82, 5, v0")
    e("v_add_u32 v82, %d, v82" % TBL_OFF)
    e("ds_read_b128 v[116:119], v82 offset:16")
    e("v_lshlrev_b32 v82, 3, v0")
    e("v_add_u32 v83, %d, v82" % AGGL_OFF)
    for q in range(16):
        e("ds_read_b64 %s, v83 offset:%d" % (vr(AG + 2 * q, 2), q * 640))
    e("s_waitcnt lgkmcnt(0)")
    e("v_mov_b32 v120, v%d" % AG)
    e("v_mov_b32 v121, v%d" % (AG + 1))
    for q in range(1, 16):
        e("v_fma_f32 v122, -v117, v121, v%d" % (AG + 2 * q))
        e("v_fma_f32 v123, v117, v120, v%d" % (AG + 2 * q + 1))
        e("v_fma_f32 v120, v116, v120, v122")
        e("v_fma_f32 v121, v116, v121, v123")
    e("s_mul_i32 s37, s%d, 80" % S_CB)
    e("v_add_u32 v124, s37, v0")
    e("v_lshlrev_b32 v124, 3, v124")
    e("v_add_u32 v124, %d, v124" % AGG_OFF)
    e("s_mul_i32 s37, s%d, %d" % (S_RB, P * 8))
    e("buffer_store_dwordx2 v[120:121], v124, s[%d:%d], s37 offen sc1" % (S_WS, S_WS + 3))
    e.nop(2)
    e("v_mov_b32 v120, 0")
    e("v_mov_b32 v121, 0")
    e("s_cmp_eq_u32 s%d, 0" % S_RB)
    e("s_cbranch_scc1 k1s_nocarry")
    PG = 216
    e("s_mov_b32 s52, 0")
    e.label("k1s_poll")
    e("v_mov_b32 v125, v124")
    for c in range(15):
        e("buffer_load_dwordx2 %s, v125, s[%d:%d], 0 offen sc1" % (vr(PG + 2 * c, 2), S_WS, S_WS + 3))
        if c < 14:
            e("v_add_u32 v125, %d, v125" % (P * 8))
    e("s_waitcnt vmcnt(0)")
    e("s_mov_b64 s[54:55], 0")
    for c in range(15):
        e("s_cmp_gt_u32 s%d, %d" % (S_RB, c))
        e("s_cbranch_scc0 k1s_chk")
        e("v_cmp_eq_u32 vcc, -1, v%d" % (PG + 2 * c))
        e("s_or_b64 s[54:55], s[54:55], vcc")
        e("v_cmp_eq_u32 vcc, -1, v%d" % (PG + 2 * c + 1))
        e("s_or_b64 s[54:55], s[54:55], vcc")
    e.label("k1s_chk")
    e("s_cmp_eq_u64 s[54:55], 0")
    e("s_cbranch_scc1 k1s_polled")
    e("s_sleep 4")
    e("s_add_u32 s52, s52, 1")
    e("s_cmp_lt_u32 s52, 0x40000")
    e("s_cbranch_scc1 k1s_poll")
    e.label("k1s_polled")
    ts_stamp(e, 13, 1, S_WS)
    for c in range(15):
        e("s_cmp_gt_u32 s%d, %d" % (S_RB, c))
        e("s_cbranch_scc0 k1s_nocarry")
        e("v_fma_f32 v122, -v119, v121, v%d" % (PG + 2 * c))
        e("v_fma_f32 v123, v119, v120, v%d" % (PG + 2 * c + 1))
        e("v_fma_f32 v120, v118, v120, v122")
        e("v_fma_f32 v121, v118, v121, v123")
    e.label("k1s_nocarry")
    e("v_add_u32 v83, %d, v82" % CARL_OFF)
    for q in range(16):
        e("ds_write_b64 v83, v[120:121] offset:%d" % (q * 640))
        if q < 15:
            e("v_fma_f32 v122, -v117, v121, v%d" % (AG + 2 * q))
            e("v_fma_f32 v123, v117, v120, v%d" % (AG + 2 * q + 1))
            e("v_fma_f32 v120, v116, v120, v122")
            e("v_fma_f32 v121, v116, v121, v123")
    e.label("k1s_nocomb")
    e("s_mov_b64 exec, s[48:49]")
    e("s_waitcnt lgkmcnt(0)")
    e("s_barrier")
    ts_stamp(e, 14, 1, S_WS)
    e("v_add_u32 v81, %d, v80" % CARL_OFF)
    for j in range(5):
        e("ds_read_b64 %s, v81 offset:%d" % (vr(HST + 2 * j, 2), j * 128))
    e("s_mul_i32 s37, s%d, %d" % (S_W, 32 * SOP + 128))
    e("s_add_u32 s37, s37, %d" % OUTL_OFF)
    e("v_mul_u32_u24 v82, %d, v4" % (8 * SOP + 32))
    e("v_lshl_add_u32 v82, v3, 1, v82")
    e("v_add_u32 v82, s37, v82")
    e("s_waitcnt lgkmcnt(0)")
    for s in range(8):
        for j in range(5):
            hr, hi = HST + 2 * j, HST + 2 * j + 1
            ai = CST + 4 * j + 1
            t = TMP + 2 * j
            e("v_fma_f32 v%d, -v%d, v%d, v%d" % (t, ai, hi, ur(j, s)))
            e("v_fma_f32 v%d, v%d, v%d, v%d" % (t + 1, ai, hr, ui(j, s)))
        for j in range(5):
            hr, hi = HST + 2 * j, HST + 2 * j + 1
            ar = CST + 4 * j
            t = TMP + 2 * j
            e("v_fma_f32 v%d, v%d, v%d, v%d" % (hr, ar, hr, t))
            e("v_fma_f32 v%d, v%d, v%d, v%d" % (hi, ar, hi, t + 1))
        for j in range(5):
            hr, hi = HST + 2 * j, HST + 2 * j + 1
            cr = CST + 4 * j + 2
            e("v_mul_f32 v%d, v%d, v%d" % (ur(j, s), cr, hr))
            e("v_mul_f32 v%d, -v%d, v%d" % (ui(j, s), cr, hi))
        for j in range(5):
            hr, hi = HST + 2 * j, HST + 2 * j + 1
            ci = CST + 4 * j + 3
            e("v_fma_f32 v%d, -v%d, v%d, v%d" % (ur(j, s), ci, hi, ur(j, s)))
            e("v_fma_f32 v%d, -v%d, v%d, v%d" % (ui(j, s), ci, hr, ui(j, s)))
    PK = 84
    for part, uf in enumerate((ur, ui)):
        for j in range(5):
            o = PK + (part * 5 + j) * 4
            for k in range(4):
                e("v_cvt_pk_bf16_f32 v%d, v%d, v%d" % (o + k, uf(j, 2 * k), uf(j, 2 * k + 1)))
            for k in range(4):
                off = part * 160 + 32 * j
                e("ds_write_b16 v82, v%d offset:%d" % (o + k, 2 * k * SOP + off))
                e("ds_write_b16_d16_hi v82, v%d offset:%d" % (o + k, (2 * k + 1) * SOP + off))
    e("s_mov_b32 s38, 0xccccccd")
    e("s_lshl_b32 s39, s%d, 7" % S_RB)
    e("s_lshl_b32 s40, s%d, 5" % S_W)
    e("s_add_u32 s39, s39, s40")
    e("s_mul_i32 s40, s%d, 160" % S_CB)
    e("s_add_u32 s40, s40, %d" % H_OFF)
    e("s_movk_i32 s41, %d" % HP)
    RD = 136
    GA = 124
    e("s_waitcnt lgkmcnt(0)")
    for i in range(10):
        e("v_add_u32 v70, %d, v2" % (64 * i))
        e("v_mul_hi_u32 v71, v70, s38")
        e("v_mul_u32_u24 v72, 20, v71")
        e("v_sub_u32 v72, v70, v72")
        e("v_mul_u32_u24 v73, %d, v71" % SOP)
        e("v_lshl_add_u32 v73, v72, 4, v73")
        e("v_lshrrev_b32 v74, 3, v71")
        e("v_lshl_add_u32 v73, v74, 5, v73")
        e("v_add_u32 v73, s37, v73")
        e("ds_read_b128 %s, v73" % vr(RD + 4 * i, 4))
        e("v_add_u32 v71, s39, v71")
        e("v_mul_lo_u32 v71, v71, s41")
        e("v_lshl_add_u32 v71, v72, 4, v71")
        e("v_cmp_lt_u32 vcc, 9, v72")
        e("v_mov_b32 v74, 0")
        e("v_mov_b32 v75, %d" % (1280 - 160))
        e("v_cndmask_b32 v74, v74, v75, vcc")
        e("v_add3_u32 v%d, v71, v74, s40" % (GA + i))
    e("s_waitcnt lgkmcnt(0)")
    e.wt = bool(int(os.environ.get("GEN_WT_S", "1")))
    for i in range(10):
        e("buffer_store_dwordx4 %s, v%d, s[%d:%d], 0 offen" % (vr(RD + 4 * i, 4), GA + i, S_WS, S_WS + 3))
    e.wt = True
    ts_stamp(e, 15, 1, S_WS)
    e("s_waitcnt vmcnt(0)")
    ts_stamp(e, 16, 1, S_WS)
    e("s_endpgm")

    e.label("k1_ffn")
    VD = 10
    VA = 20
    VT = 28
    FR = 40
    ACC = 120
    srd(e, S_W1, 78, 79, D * F * 2)
    e("s_lshl_b32 s37, s%d, 7" % S_RB)
    e("v_add_u32 v9, s37, v7")
    e("v_mul_lo_u32 v9, v9, s36")
    e("v_add_u32 v9, v9, v5")
    for i in range(4):
        e("v_add_u32 v%d, %d, v9" % (VD + i, XN_OFF + i * 32 * XW))
    e("v_and_b32 v7, 7, v2")
    e("v_lshrrev_b32 v8, 1, v6")
    e("v_and_b32 v8, 1, v8")
    e("s_movk_i32 s37, %d" % (F * 2))
    e("v_mul_lo_u32 v9, v6, s37")
    e("s_mul_i32 s38, s%d, 384" % S_CB)
    for i in range(6):
        e("s_add_u32 s39, s%d, %d" % (S_W, 4 * i))
        e("s_mul_i32 s40, s39, 43691")
        e("s_lshr_b32 s40, s40, 17")
        e("s_mul_i32 s41, s40, 3")
        e("s_sub_u32 s41, s39, s41")
        e("s_and_b32 s42, s40, 1")
        e("s_lshl_b32 s42, s42, 1")
        e("v_or_b32 v5, s42, v8")
        e("v_lshlrev_b32 v5, 1, v5")
        e("v_xor_b32 v5, v5, v7")
        e("v_lshl_add_u32 v5, v5, 4, v9")
        e("s_mul_i32 s40, s40, %d" % (8 * F * 2))
        e("s_lshl_b32 s41, s41, 7")
        e("s_add_u32 s40, s40, s41")
        e("s_add_u32 s40, s40, s38")
        e("v_add_u32 v%d, s40, v5" % (VD + 4 + i))

    def ffn_hook():
        e("s_lshr_b32 s37, s%d, 1" % S_W)
        e("s_lshl_b32 s37, s37, 13")
        e("v_mov_b32 v36, s37")
        lds_read_addrs(e, VA, 36, F_BUF)
        e("v_lshrrev_b32 v5, 2, v3")
        e("v_and_b32 v6, 3, v3")
        e("v_mul_u32_u24 v7, 3072, v4")
        e("v_lshl_add_u32 v7, v5, 7, v7")
        e("v_lshl_add_u32 v7, v6, 3, v7")
        e("v_lshrrev_b32 v8, 1, v5")
        e("v_and_b32 v9, 1, v4")
        e("v_lshl_or_b32 v8, v9, 1, v8")
        e("s_and_b32 s37, s%d, 1" % S_W)
        e("s_mul_i32 s37, s37, 6")
        for b in range(6):
            e("s_add_u32 s38, s37, %d" % b)
            e("s_and_b32 s39, s38, 3")
            e("s_lshr_b32 s38, s38, 2")
            e("s_lshl_b32 s38, s38, 10")
            e("s_add_u32 s38, s38, %d" % (128 * 128))
            e("v_xor_b32 v5, s39, v8")
            e("v_lshl_add_u32 v5, v5, 5, v7")
            e("v_add_u32 v%d, s38, v5" % (VT + b))
            e("v_add_u32 v%d, %d, v%d" % (VT + 6 + b, 2 * F_BUF, VT + b))

    def f_frag(setid, i):
        return FR + (setid * 10 + i) * 4

    def f_reads(s, ks, setid):
        buf = s % NBUF
        out = []
        for i in range(4):
            out.append("ds_read_b128 %s, v%d offset:%d" % (vr(f_frag(setid, i), 4), VA + ks * NBUF + buf, i * 2048))
        for b in range(6):
            for h in range(2):
                out.append("ds_read_b64_tr_b16 %s, v%d offset:%d" % (vr(f_frag(setid, 4 + b) + 2 * h, 2), VT + 6 * (buf >> 1) + b,
                                                                   (buf & 1) * F_BUF + ks * 12288 + h * 512))
        return out

    main_loop(e, F_BUF, 10, VD, [S_WS] * 4 + [S_W1] * 6, [S_K] * 4 + [S_K2] * 6,
              f_reads, 4, 6, f_frag, lambda st, j: f_frag(st, 4 + j), ACC, True, ffn_hook)

    e("s_mul_i32 s37, s%d, %d" % (S_W, 64 * FOP))
    e("s_add_u32 s37, s37, %d" % FOUT_OFF)
    e("v_mul_u32_u24 v40, %d, v3" % FOP)
    e("v_lshl_add_u32 v40, v4, 3, v40")
    e("v_add_u32 v40, s37, v40")
    e("s_mov_b32 s48, 0xbfb8aa3b")
    e.nop(8)
    T = 44
    for a in range(4):
        for m in range(3):
            src = [ACC + (a * 6 + 2 * m) * 4 + r for r in range(4)] + [ACC + (a * 6 + 2 * m + 1) * 4 + r for r in range(4)]
            tb = T + ((a * 3 + m) & 1) * 24
            for k in range(4):
                e("v_cvt_pk_bf16_f32 v%d, v%d, v%d" % (tb + 16 + k, src[2 * k], src[2 * k + 1]))
            for k in range(4):
                e("v_lshlrev_b32 v%d, 16, v%d" % (tb + 2 * k, tb + 16 + k))
                e("v_and_b32 v%d, 0xffff0000, v%d" % (tb + 2 * k + 1, tb + 16 + k))
            for k in range(8):
                e("v_mul_f32 v%d, s48, v%d" % (tb + 8 + k, tb + k))
            for k in range(8):
                e("v_exp_f32 v%d, v%d" % (tb + 8 + k, tb + 8 + k))
            for k in range(8):
                e("v_add_f32 v%d, 1.0, v%d" % (tb + 8 + k, tb + 8 + k))
            for k in range(8):
                e("v_rcp_f32 v%d, v%d" % (tb + 8 + k, tb + 8 + k))
            for k in range(8):
                e("v_mul_f32 v%d, v%d, v%d" % (tb + k, tb + k, tb + 8 + k))
            for k in range(4):
                e("v_cvt_pk_bf16_f32 v%d, v%d, v%d" % (tb + 20 + k, tb + 2 * k, tb + 2 * k + 1))
            e("ds_write_b64 v40, %s offset:%d" % (vr(tb + 20, 2), 16 * a * FOP + 64 * m))
            e("ds_write_b64 v40, %s offset:%d" % (vr(tb + 22, 2), 16 * a * FOP + 64 * m + 32))
    e("s_mov_b32 s38, 0x15555556")
    e("s_lshl_b32 s39, s%d, 7" % S_RB)
    e("s_lshr_b32 s40, s%d, 1" % S_W)
    e("s_lshl_b32 s40, s40, 6")
    e("s_add_u32 s39, s39, s40")
    e("s_mul_i32 s40, s%d, 384" % S_CB)
    e("s_and_b32 s41, s%d, 1" % S_W)
    e("s_mul_i32 s41, s41, 192")
    e("s_add_u32 s40, s40, s41")
    e("s_add_u32 s40, s40, %d" % (H_OFF + 2 * P * 2))
    e("s_movk_i32 s41, %d" % HP)
    RD = 120
    GA = 100
    e("s_waitcnt lgkmcnt(0)")
    for i in range(12):
        e("v_add_u32 v92, %d, v2" % (64 * i))
        e("v_mul_hi_u32 v93, v92, s38")
        e("v_mul_u32_u24 v94, 12, v93")
        e("v_sub_u32 v94, v92, v94")
        e("v_mul_u32_u24 v95, %d, v93" % FOP)
        e("v_lshl_add_u32 v95, v94, 4, v95")
        e("v_add_u32 v95, s37, v95")
        e("ds_read_b128 %s, v95" % vr(RD + 4 * i, 4))
        e("v_add_u32 v93, s39, v93")
        e("v_mul_lo_u32 v93, v93, s41")
        e("v_lshl_add_u32 v93, v94, 4, v93")
        e("v_add_u32 v%d, s40, v93" % (GA + i))
    e("s_waitcnt lgkmcnt(0)")
    e.wt = bool(int(os.environ.get("GEN_WT_F", "1")))
    for i in range(12):
        e("buffer_store_dwordx4 %s, v%d, s[%d:%d], 0 offen" % (vr(RD + 4 * i, 4), GA + i, S_WS, S_WS + 3))
    e.wt = True
    ts_stamp(e, 15, 1, S_WS)
    e("s_waitcnt vmcnt(0)")
    ts_stamp(e, 16, 1, S_WS)
    e.label("k1_exit")
    e("s_endpgm")
```

```python
from gen import *

WBUF = 144 * 128
WREG = 2 * WBUF
K2_LDS = 4 * WREG

S_WS = 8
S_X = 12
S_DSK = 16
S_OUT = 20
S_RB, S_CB, S_W = 30, 31, 32
S_BW, S_BH, S_LB, S_T = 33, 34, 35, 36
S_A = 24
VE2, VO2, VTR, VF = 12, 13, 12, 14


def k2_loop(e, n, VE, VO, VR, FR, ACC, ffn):
    def frag(st, i):
        return FR + ((st % 2) * 18 + i) * 4

    def dma(s):
        out = []
        for I in range(18):
            m0 = "s_add_u32 m0, s%d, %d" % (S_LB, (s % 2) * WBUF + I * 1024)
            if I >= 10:
                out.append([m0, "s_add_u32 s%d, s%d, %d" % (S_T, S_BH, 8 * (I - 10) * HP + 128 * s),
                            "buffer_load_dwordx4 v%d, s[%d:%d], s%d offen lds" % (VO if I & 1 else VE, S_WS, S_WS + 3, S_T)])
            else:
                out.append([m0, "s_add_u32 s%d, s%d, %d" % (S_T, S_BW, 8 * I * (W2P if ffn else XP) + 128 * s),
                            "buffer_load_dwordx4 v%d, s[%d:%d], s%d offen lds" % (VO2 if I & 1 else VE2, S_A, S_A + 3, S_T)])
        return out

    def reads(s):
        out = []
        for ks in range(2):
            for t in range(9):
                if True:
                    out.append(["ds_read_b128 %s, v%d offset:%d" % (vr(frag(s, ks * 9 + t), 4), VR + ks, (s % 2) * WBUF + t * 2048)])
        return out

    def mfmas(s):
        out = []
        for ks in range(2):
            for a in range(5):
                for b in range(4):
                    acc = ACC + (a * 4 + b) * 4
                    c = "0" if (s == 0 and ks == 0) else vr(acc, 4)
                    out.append("v_mfma_f32_16x16x32_bf16 %s, %s, %s, %s" % (vr(acc, 4), vr(frag(s, ks * 9 + a), 4), vr(frag(s, ks * 9 + 5 + b), 4), c))
        return out

    for s in range(2):
        for g in dma(s):
            for ins in g:
                e(ins)
    e("s_waitcnt vmcnt(18)")
    ts_stamp(e, 16, 2, S_WS)
    for g in reads(0):
        for ins in g:
            e(ins)
    e("s_waitcnt lgkmcnt(0)")
    if 2 < n:
        for g in dma(2):
            for ins in g:
                e(ins)
    for s in range(n):
        mf = mfmas(s)
        sched = {}
        if s + 1 < n:
            sched.setdefault(-1, []).append("s_waitcnt vmcnt(%d)" % (18 if s + 2 < n else 0))
            for k, g in enumerate(reads(s + 1)):
                sched.setdefault(k, []).extend(g)
            if s + 3 < n:
                sched.setdefault(21, []).append("s_waitcnt lgkmcnt(0)")
                for k, g in enumerate(dma(s + 3)):
                    sched.setdefault(22 + k, []).extend(g)
        for ins in sched.get(-1, []):
            e(ins)
        for k, m in enumerate(mf):
            e(m)
            for ins in sched.get(k, []):
                e(ins)
        if s + 1 < n:
            e("s_waitcnt lgkmcnt(0)")
        ts_stamp(e, 4 + s, 2, S_WS)


def gen_k2(e):
    kernel_begin(e, "k2_kernel")
    e("s_cmp_ge_u32 s2, 256")
    e("s_cbranch_scc1 k2_exit")
    e("s_load_dwordx2 s[34:35], s[0:1], 0")
    e("s_load_dwordx2 s[36:37], s[0:1], 64")
    e("s_load_dwordx2 s[38:39], s[0:1], 96")
    e("s_load_dwordx2 s[40:41], s[0:1], 112")
    e("s_load_dwordx4 s[44:47], s[0:1], 40")
    e("s_load_dwordx2 s[48:49], s[0:1], 88")
    e("v_lshrrev_b32 v1, 6, v0")
    e("v_and_b32 v2, 63, v0")
    e("v_readfirstlane_b32 s%d, v1" % S_W)
    e("v_and_b32 v3, 15, v0")
    e("v_lshrrev_b32 v4, 4, v2")
    e("s_waitcnt lgkmcnt(0)")
    srd(e, S_WS, 40, 41, WS_USED)
    srd(e, S_X, 34, 35, L * D * 2)
    srd(e, S_DSK, 36, 37, D * 2)
    srd(e, S_OUT, 38, 39, L * D * 4)
    ts_stamp(e, 0, 2, S_WS)
    e("s_and_b32 s34, s2, 7")
    e("s_lshl_b32 s34, s34, 2")
    e("s_lshr_b32 s35, s2, 3")
    e("s_and_b32 s35, s35, 3")
    e("s_add_u32 s%d, s34, s35" % S_RB)
    e("s_lshr_b32 s%d, s2, 5" % S_CB)
    e("s_mul_i32 s37, s%d, 1280" % S_W)
    e("s_cmp_eq_u32 s%d, 3" % S_W)
    e("s_cselect_b32 s37, 4096, s37")
    e("s_cmp_eq_u32 s%d, 1" % S_W)
    e("s_cselect_b32 s%d, s46, s44" % S_A)
    e("s_cselect_b32 s%d, s47, s45" % (S_A + 1))
    e("s_mov_b32 s%d, %d" % (S_A + 2, P * D * 2))
    e("s_cmp_ge_u32 s%d, 2" % S_W)
    e("s_cselect_b32 s%d, s40, s%d" % (S_A, S_A))
    e("s_cselect_b32 s%d, s41, s%d" % (S_A + 1, S_A + 1))
    e("s_cselect_b32 s%d, %d, s%d" % (S_A + 2, WS_USED, S_A + 2))
    e("s_and_b32 s%d, s%d, 0xffff" % (S_A + 1, S_A + 1))
    e("s_mov_b32 s%d, 0x00020000" % (S_A + 3))
    e("s_mul_i32 s%d, s%d, %d" % (S_BW, S_CB, 80 * XP))
    e("s_mul_i32 s38, s%d, %d" % (S_CB, 80 * W2P))
    e("s_cmp_eq_u32 s%d, 3" % S_W)
    e("s_cselect_b32 s39, 1536, 0")
    e("s_add_u32 s38, s38, s39")
    e("s_add_u32 s38, s38, %d" % W2_OFF)
    e("s_cmp_ge_u32 s%d, 2" % S_W)
    e("s_cselect_b32 s%d, s38, s%d" % (S_BW, S_BW))
    e("s_mul_i32 s%d, s%d, %d" % (S_BH, S_RB, 64 * HP))
    e("s_add_u32 s%d, s%d, s37" % (S_BH, S_BH))
    e("s_add_u32 s%d, s%d, %d" % (S_BH, S_BH, H_OFF))
    e("s_mul_i32 s%d, s%d, %d" % (S_LB, S_W, WREG))
    VE, VO, VR = 8, 9, 10
    FR = 24
    ACC = 168
    e("v_lshrrev_b32 v5, 3, v2")
    e("s_movk_i32 s37, %d" % HP)
    e("v_mul_lo_u32 v5, v5, s37")
    e("v_and_b32 v6, 7, v2")
    e("v_xor_b32 v7, v6, v4")
    e("v_lshl_add_u32 v%d, v7, 4, v5" % VE)
    e("v_xor_b32 v7, 4, v7")
    e("v_lshl_add_u32 v%d, v7, 4, v5" % VO)
    for ks in range(2):
        e("v_lshrrev_b32 v5, 1, v3")
        e("v_or_b32 v6, %d, v4" % (4 * ks))
        e("v_xor_b32 v5, v5, v6")
        e("v_lshlrev_b32 v5, 4, v5")
        e("v_lshl_add_u32 v5, v3, 7, v5")
        e("v_add_u32 v%d, s%d, v5" % (VR + ks, S_LB))
    e("s_movk_i32 s37, %d" % XP)
    e("s_cmp_ge_u32 s%d, 2" % S_W)
    e("s_cselect_b32 s37, %d, s37" % W2P)
    e("v_lshrrev_b32 v5, 3, v2")
    e("v_mul_lo_u32 v5, v5, s37")
    e("v_and_b32 v6, 7, v2")
    e("v_xor_b32 v7, v6, v4")
    e("v_lshl_add_u32 v%d, v7, 4, v5" % VE2)
    e("v_xor_b32 v7, 4, v7")
    e("v_lshl_add_u32 v%d, v7, 4, v5" % VO2)
    e("s_cmp_ge_u32 s%d, 2" % S_W)
    e("s_cbranch_scc1 k2_ffn")
    k2_loop(e, 10, VE, VO, VR, FR, ACC, False)
    e("s_branch k2_epi")
    e.label("k2_ffn")
    k2_loop(e, 12, VE, VO, VR, FR, ACC, True)
    e.label("k2_epi")
    ts_stamp(e, 1, 2, S_WS)
    e("s_mov_b32 s37, 0xccccccd")
    e("s_lshl_b32 s34, s%d, 6" % S_RB)
    e("s_lshl_b32 s38, s%d, 4" % S_W)
    e("s_add_u32 s34, s34, s38")
    e("s_mul_i32 s38, s%d, 80" % S_CB)
    e("s_mul_i32 s39, s%d, %d" % (S_W, 16 * 336))
    e("s_movk_i32 s36, %d" % XW)
    XR, XNR, DS = 24, 34, 44
    LA, OA = 54, 59
    for i in range(5):
        e("v_add_u32 v5, %d, v2" % (64 * i))
        e("v_mul_hi_u32 v6, v5, s37")
        e("v_mul_u32_u24 v7, 20, v6")
        e("v_sub_u32 v7, v5, v7")
        e("v_mul_u32_u24 v9, 336, v6")
        e("v_lshl_add_u32 v9, v7, 4, v9")
        e("v_add_u32 v%d, s39, v9" % (LA + i))
        e("v_add_u32 v6, s34, v6")
        e("v_lshl_add_u32 v7, v7, 2, s38")
        e("v_mul_u32_u24 v8, %d, v6" % D)
        e("v_add_u32 v8, v8, v7")
        e("v_lshlrev_b32 v%d, 2, v8" % (OA + i))
        e("v_lshlrev_b32 v8, 1, v8")
        e("v_mul_lo_u32 v9, v6, s36")
        e("v_lshl_add_u32 v9, v7, 1, v9")
        e("v_lshlrev_b32 v7, 1, v7")
        e("buffer_load_dwordx2 %s, v8, s[%d:%d], 0 offen" % (vr(XR + 2 * i, 2), S_X, S_X + 3))
        e("buffer_load_dwordx2 %s, v9, s[%d:%d], 0 offen offset:%d" % (vr(XNR + 2 * i, 2), S_WS, S_WS + 3, XN_OFF))
        e("buffer_load_dwordx2 %s, v7, s[%d:%d], 0 offen" % (vr(DS + 2 * i, 2), S_DSK, S_DSK + 3))
    e("v_mul_u32_u24 v10, 336, v3")
    e("v_lshl_add_u32 v10, v4, 4, v10")
    e("v_add_u32 v10, s%d, v10" % S_LB)
    e.nop(4)
    for a in range(5):
        for b in range(4):
            e("ds_write_b128 v10, %s offset:%d" % (vr(ACC + 4 * (a * 4 + b), 4), b * 16 * 336 + a * 64))
    e("s_waitcnt lgkmcnt(0)")
    e("s_barrier")
    ts_stamp(e, 2, 2, S_WS)
    PR = 64
    for i in range(5):
        e("v_add_u32 v11, %d, v%d" % (2 * WREG, LA + i))
        e("ds_read_b128 %s, v%d" % (vr(PR + (0 * 5 + i) * 4, 4), LA + i))
        e("ds_read_b128 %s, v%d offset:%d" % (vr(PR + (1 * 5 + i) * 4, 4), LA + i, WREG))
        e("ds_read_b128 %s, v11" % vr(PR + (2 * 5 + i) * 4, 4))
        e("ds_read_b128 %s, v11 offset:%d" % (vr(PR + (3 * 5 + i) * 4, 4), WREG))
    e("s_mov_b32 s34, 0xbfb8aa3b")
    e("s_waitcnt vmcnt(0) lgkmcnt(0)")
    for a in range(5):
        S = [PR + (0 * 5 + a) * 4 + r for r in range(4)]
        S1 = [PR + (1 * 5 + a) * 4 + r for r in range(4)]
        O = [PR + (2 * 5 + a) * 4 + r for r in range(4)]
        O1 = [PR + (3 * 5 + a) * 4 + r for r in range(4)]
        T = 144 + (a & 1) * 32
        for r in range(4):
            e("v_add_f32 v%d, v%d, v%d" % (S[r], S[r], S1[r]))
            e("v_add_f32 v%d, v%d, v%d" % (O[r], O[r], O1[r]))
        for (base, src) in ((0, XR), (4, XNR), (8, DS)):
            for k in range(2):
                e("v_lshlrev_b32 v%d, 16, v%d" % (T + base + 2 * k, src + 2 * a + k))
                e("v_and_b32 v%d, 0xffff0000, v%d" % (T + base + 2 * k + 1, src + 2 * a + k))
        for r in range(4):
            e("v_mul_f32 v%d, v%d, v%d" % (T + 4 + r, T + 4 + r, T + 8 + r))
        for k in range(2):
            e("v_cvt_pk_bf16_f32 v%d, v%d, v%d" % (T + 12 + k, T + 4 + 2 * k, T + 5 + 2 * k))
            e("v_cvt_pk_bf16_f32 v%d, v%d, v%d" % (T + 14 + k, O[2 * k], O[2 * k + 1]))
        for k in range(2):
            e("v_lshlrev_b32 v%d, 16, v%d" % (T + 4 + 2 * k, T + 12 + k))
            e("v_and_b32 v%d, 0xffff0000, v%d" % (T + 5 + 2 * k, T + 12 + k))
            e("v_lshlrev_b32 v%d, 16, v%d" % (T + 8 + 2 * k, T + 14 + k))
            e("v_and_b32 v%d, 0xffff0000, v%d" % (T + 9 + 2 * k, T + 14 + k))
        for r in range(4):
            e("v_add_f32 v%d, v%d, v%d" % (S[r], S[r], T + 4 + r))
            e("v_mul_f32 v%d, s34, v%d" % (T + 16 + r, T + 8 + r))
        for r in range(4):
            e("v_exp_f32 v%d, v%d" % (T + 16 + r, T + 16 + r))
        for r in range(4):
            e("v_add_f32 v%d, 1.0, v%d" % (T + 16 + r, T + 16 + r))
        for r in range(4):
            e("v_rcp_f32 v%d, v%d" % (T + 16 + r, T + 16 + r))
        for r in range(4):
            e("v_mul_f32 v%d, v%d, v%d" % (T + 8 + r, T + 8 + r, T + 16 + r))
        for k in range(2):
            e("v_cvt_pk_bf16_f32 v%d, v%d, v%d" % (T + 12 + k, T + 8 + 2 * k, T + 9 + 2 * k))
        for k in range(2):
            e("v_lshlrev_b32 v%d, 16, v%d" % (T + 8 + 2 * k, T + 12 + k))
            e("v_and_b32 v%d, 0xffff0000, v%d" % (T + 9 + 2 * k, T + 12 + k))
        for r in range(4):
            e("v_mul_f32 v%d, v%d, v%d" % (T + 20 + r, S[r], T + 8 + r))
        for r in range(4):
            e("v_add_f32 v%d, v%d, v%d" % (T + 20 + r, T + r, T + 20 + r))
        e("buffer_store_dwordx4 %s, v%d, s[%d:%d], 0 offen" % (vr(T + 20, 4), OA + a, S_OUT, S_OUT + 3))
    ts_stamp(e, 3, 2, S_WS)
    e.label("k2_exit")
    e("s_endpgm")
```

```python
import sys

NAME = "recurrent_scan__ssm_conv_s5__dense_activation_silu__prompt"
L, D, P, F = 2048, 640, 640, 1536
KK = 2 * P + F

HP = KK * 2 + 128
XP = D * 2
XW = D * 2 + 128
XN_OFF = 0
W2P = F * 2 + 128
W1_OFF = XN_OFF + L * XW
W2_OFF = W1_OFF
H_OFF = W2_OFF + D * W2P
SB_OFF = H_OFF + L * HP
AGG_OFF = SB_OFF + L * D * 4
TS_OFF = AGG_OFF + 16 * P * 8
WS_USED = TS_OFF + 3 * 1024 * 128
import os
TS = int(os.environ.get("GEN_TS", "0"))
STFLAG = os.environ.get("GEN_ST", "sc1")

HEADER = open("cdna_kernels/%s.s.ref" % NAME).read().split("; Override launch geometry")[0]


class Em:
    def __init__(self):
        self.lines = []
        self.wt = False

    def __call__(self, s):
        if s.startswith("buffer_store") and " sc1" not in s and STFLAG and self.wt:
            s += " " + STFLAG
        self.lines.append("    " + s)

    def label(self, s):
        self.lines.append(s + ":")

    def raw(self, s):
        self.lines.append(s)

    def nop(self, n):
        while n > 0:
            k = min(n, 16)
            self("s_nop %d" % (k - 1))
            n -= k

    def text(self):
        return "\n".join(self.lines) + "\n"


def vr(a, n):
    return "v[%d:%d]" % (a, a + n - 1)


def sr(a, n):
    return "s[%d:%d]" % (a, a + n - 1)


def srd(e, dst, lo, hi, size):
    e("s_mov_b32 s%d, s%d" % (dst, lo))
    e("s_and_b32 s%d, s%d, 0xffff" % (dst + 1, hi))
    e("s_mov_b32 s%d, %d" % (dst + 2, size))
    e("s_mov_b32 s%d, 0x00020000" % (dst + 3))


def kernel_begin(e, name):
    e.raw(".globl %s" % name)
    e.raw(".p2align 8")
    e.raw(".type %s,@function" % name)
    e.label(name)


def kernel_desc(e, name, vgpr=256, sgpr=102):
    e.raw(".p2align 6")
    e.raw(".amdhsa_kernel %s" % name)
    e.raw("  .amdhsa_next_free_vgpr %d" % vgpr)
    e.raw("  .amdhsa_next_free_sgpr %d" % sgpr)
    e.raw("  .amdhsa_accum_offset %d" % (((vgpr + 3) // 4) * 4))
    e.raw("  .amdhsa_group_segment_fixed_size 0")
    e.raw("  .amdhsa_kernarg_size 120")
    e.raw("  .amdhsa_user_sgpr_count 2")
    e.raw("  .amdhsa_user_sgpr_kernarg_segment_ptr 1")
    e.raw("  .amdhsa_system_sgpr_workgroup_id_x 1")
    e.raw("  .amdhsa_float_denorm_mode_32 3")
    e.raw(".end_amdhsa_kernel")


def ts_stamp(e, idx, kern, srdws, real=False):
    if not TS:
        return
    sb, vb = (40, 96) if kern == 0 else (90, 250)
    e("%s s[%d:%d]" % ("s_memrealtime" if real else "s_memtime", sb, sb + 1))
    e("s_waitcnt lgkmcnt(0)")
    e("v_mov_b32 v%d, s%d" % (vb, sb))
    e("s_lshl_b32 s%d, s2, 7" % (sb + 2))
    e("s_add_u32 s%d, s%d, %d" % (sb + 2, sb + 2, TS_OFF + kern * 1024 * 128 + idx * 4))
    e("v_mov_b32 v%d, s%d" % (vb + 1, sb + 2))
    e("s_mov_b64 s[%d:%d], exec" % (sb + 4, sb + 5))
    e("v_cmp_eq_u32 vcc, 0, v0")
    e("s_and_b64 exec, exec, vcc")
    e("buffer_store_dword v%d, v%d, s[%d:%d], 0 offen" % (vb, vb + 1, srdws, srdws + 3))
    e("s_mov_b64 exec, s[%d:%d]" % (sb + 4, sb + 5))


def dpp_allreduce16(e, v, t):
    for mod in ("quad_perm:[1,0,3,2]", "quad_perm:[2,3,0,1]", "row_half_mirror", "row_mirror"):
        e.nop(2)
        e("v_add_f32_dpp v%d, v%d, v%d %s row_mask:0xf bank_mask:0xf" % (t, v, v, mod))
        e("v_mov_b32 v%d, v%d" % (v, t))


def rne_bf16(e, dst, src):
    e("v_cvt_pk_bf16_f32 v%d, v%d, v%d" % (dst, src, src))
    e("v_lshlrev_b32 v%d, 16, v%d" % (dst, dst))


K0_LN = 128
K0_CPB = 0
K0_TW1 = 0
K0_ILC = 0
K0_TW2 = 240
K0_SEN = 20
K0_PF = int(os.environ.get("GEN_PF", "320"))
K0_TOTAL = K0_LN + K0_CPB + K0_TW1 + K0_ILC + K0_TW2 + K0_SEN
K0_GRID = K0_TOTAL + K0_PF


def gen_k0(e):
    kernel_begin(e, "k0_kernel")
    e("s_load_dwordx2 s[20:21], s[0:1], 0")
    e("s_load_dwordx4 s[24:27], s[0:1], 24")
    e("s_load_dwordx4 s[28:31], s[0:1], 40")
    e("s_load_dwordx4 s[32:35], s[0:1], 80")
    e("s_load_dwordx2 s[36:37], s[0:1], 112")
    e("s_waitcnt lgkmcnt(0)")
    srd(e, 8, 36, 37, WS_USED)
    ts_stamp(e, 0, 0, 8, True)
    e("s_cmp_lt_u32 s2, %d" % K0_LN)
    e("s_cbranch_scc1 k0_ln")
    e("s_cmp_lt_u32 s2, %d" % (K0_LN + K0_CPB))
    e("s_cbranch_scc1 k0_cpb")
    e("s_cmp_lt_u32 s2, %d" % (K0_LN + K0_CPB + K0_TW1))
    e("s_cbranch_scc1 k0_tw1")
    e("s_cmp_lt_u32 s2, %d" % (K0_LN + K0_CPB + K0_TW1 + K0_ILC))
    e("s_cbranch_scc1 k0_ilc")
    e("s_cmp_lt_u32 s2, %d" % (K0_TOTAL - K0_SEN))
    e("s_cbranch_scc1 k0_tw2")
    e("s_cmp_lt_u32 s2, %d" % K0_TOTAL)
    e("s_cbranch_scc0 k0_pf")
    e("s_sub_u32 s3, s2, %d" % (K0_TOTAL - K0_SEN))
    e("s_lshl_b32 s3, s3, 12")
    e("s_add_u32 s3, s3, %d" % AGG_OFF)
    e("v_lshlrev_b32 v1, 4, v0")
    e("v_add_u32 v1, s3, v1")
    for i in range(4):
        e("v_mov_b32 v%d, -1" % (4 + i))
    e("buffer_store_dwordx4 v[4:7], v1, s[8:11], 0 offen")
    e.label("k0_exit")
    e("s_endpgm")
    e.label("k0_pf")
    e("s_cmp_lt_u32 s2, %d" % K0_GRID)
    e("s_cbranch_scc0 k0_exit")
    e("s_sub_u32 s3, s2, %d" % K0_TOTAL)
    e("s_mov_b32 s12, s24")
    e("s_mov_b32 s13, s25")
    e("s_mov_b32 s14, %d" % (P * D * 2))
    e("s_mov_b32 s6, s3")
    for k, (lo, hi, first) in enumerate(((26, 27, 50), (28, 29, 100), (30, 31, 150), (32, 33, 200))):
        e("s_sub_u32 s7, s3, %d" % first)
        e("s_cmp_ge_u32 s3, %d" % first)
        e("s_cselect_b32 s12, s%d, s12" % lo)
        e("s_cselect_b32 s13, s%d, s13" % hi)
        e("s_cselect_b32 s6, s7, s6")
        if k >= 3:
            e("s_cselect_b32 s14, %d, s14" % (D * F * 2))
    e("s_and_b32 s13, s13, 0xffff")
    e("s_mov_b32 s15, 0x00020000")
    e("s_lshl_b32 s6, s6, 14")
    e("v_lshlrev_b32 v1, 4, v0")
    e("v_add_u32 v1, s6, v1")
    for i in range(4):
        e("buffer_load_dwordx4 %s, v1, s[12:15], 0 offen" % vr(4 + 4 * i, 4))
        e("v_add_u32 v1, 4096, v1")
    e("s_waitcnt vmcnt(0)")
    e("s_endpgm")

    e.label("k0_ln")
    srd(e, 12, 20, 21, L * D * 2)
    e("v_lshrrev_b32 v1, 4, v0")
    e("v_and_b32 v2, 15, v0")
    e("s_lshl_b32 s3, s2, 4")
    e("v_add_u32 v1, s3, v1")
    e("s_movk_i32 s4, %d" % XW)
    e("v_mul_lo_u32 v3, v1, s4")
    e("v_lshl_add_u32 v3, v2, 4, v3")
    e("s_movk_i32 s4, %d" % XP)
    e("v_mul_lo_u32 v1, v1, s4")
    e("v_lshl_add_u32 v1, v2, 4, v1")
    for i in range(5):
        e("buffer_load_dwordx4 %s, v1, s[12:15], 0 offen offset:%d" % (vr(8 + 4 * i, 4), 256 * i))
    e("s_waitcnt vmcnt(0)")
    ts_stamp(e, 1, 0, 8, True)
    X = 32
    for i in range(20):
        e("v_lshlrev_b32 v%d, 16, v%d" % (X + 2 * i, 8 + i))
        e("v_and_b32 v%d, 0xffff0000, v%d" % (X + 2 * i + 1, 8 + i))
    for a in range(4):
        e("v_add_f32 v%d, v%d, v%d" % (80 + a, X + a, X + 4 + a))
    for i in range(2, 10):
        for a in range(4):
            e("v_add_f32 v%d, v%d, v%d" % (80 + a, 80 + a, X + 4 * i + a))
    e("v_add_f32 v80, v80, v81")
    e("v_add_f32 v82, v82, v83")
    e("v_add_f32 v80, v80, v82")
    dpp_allreduce16(e, 80, 81)
    e("s_mov_b32 s5, 0x3acccccd")
    e("s_mov_b32 s6, 0x44200000")
    e("v_mul_f32 v84, s5, v80")
    e("v_fma_f32 v85, -v84, s6, v80")
    e("v_fma_f32 v84, v85, s5, v84")
    for a in range(4):
        e("v_sub_f32 v%d, v%d, v84" % (86 + a, X + a))
        e("v_mul_f32 v%d, v%d, v%d" % (80 + a, 86 + a, 86 + a))
    for i in range(1, 10):
        for a in range(4):
            e("v_sub_f32 v%d, v%d, v84" % (86 + a, X + 4 * i + a))
            e("v_fma_f32 v%d, v%d, v%d, v%d" % (80 + a, 86 + a, 86 + a, 80 + a))
    e("v_add_f32 v80, v80, v81")
    e("v_add_f32 v82, v82, v83")
    e("v_add_f32 v80, v80, v82")
    dpp_allreduce16(e, 80, 81)
    e("v_mul_f32 v85, s5, v80")
    e("v_fma_f32 v86, -v85, s6, v80")
    e("v_fma_f32 v85, v86, s5, v85")
    rne_bf16(e, 84, 84)
    rne_bf16(e, 85, 85)
    e("v_add_f32 v85, 0x3727c5ac, v85")
    rne_bf16(e, 85, 85)
    e("v_sqrt_f32 v85, v85")
    e.nop(1)
    rne_bf16(e, 85, 85)
    e("v_rcp_f32 v86, v85")
    e.nop(1)
    for i in range(20):
        a, b = X + 2 * i, X + 2 * i + 1
        e("v_sub_f32 v%d, v%d, v84" % (a, a))
        e("v_sub_f32 v%d, v%d, v84" % (b, b))
        e("v_cvt_pk_bf16_f32 v90, v%d, v%d" % (a, b))
        e("v_lshlrev_b32 v%d, 16, v90" % a)
        e("v_and_b32 v%d, 0xffff0000, v90" % b)
        e("v_mul_f32 v91, v%d, v86" % a)
        e("v_mul_f32 v92, v%d, v86" % b)
        e("v_fma_f32 v93, -v91, v85, v%d" % a)
        e("v_fma_f32 v94, -v92, v85, v%d" % b)
        e("v_fma_f32 v91, v93, v86, v91")
        e("v_fma_f32 v92, v94, v86, v92")
        e("v_cvt_pk_bf16_f32 v%d, v91, v92" % (8 + i))
    for i in range(5):
        e("buffer_store_dwordx4 %s, v3, s[8:11], 0 offen offset:%d" % (vr(8 + 4 * i, 4), 256 * i))
    ts_stamp(e, 2, 0, 8, True)
    e("s_waitcnt vmcnt(0)")
    ts_stamp(e, 3, 0, 8, True)
    e("s_endpgm")

    e.label("k0_cpb")
    e("s_sub_u32 s3, s2, %d" % K0_LN)
    e("s_mov_b32 s4, 0x1999999a")
    e("s_mul_hi_u32 s5, s3, s4")
    e("s_mul_i32 s6, s5, 10")
    e("s_sub_u32 s6, s3, s6")
    e("s_cmp_ge_u32 s6, 5")
    e("s_cselect_b32 s12, s26, s24")
    e("s_cselect_b32 s13, s27, s25")
    e("s_cselect_b32 s7, 5, 0")
    e("s_and_b32 s13, s13, 0xffff")
    e("s_mov_b32 s14, %d" % (P * D * 2))
    e("s_mov_b32 s15, 0x00020000")
    e("s_sub_u32 s6, s6, s7")
    e("s_mul_i32 s5, s5, 80")
    e("s_lshl_b32 s6, s6, 4")
    e("s_add_u32 s5, s5, s6")
    e("v_lshrrev_b32 v1, 4, v0")
    e("v_and_b32 v2, 15, v0")
    e("s_movk_i32 s4, %d" % XP)
    e("v_add_u32 v3, s5, v1")
    e("v_mul_lo_u32 v3, v3, s4")
    e("v_lshl_add_u32 v3, v2, 4, v3")
    e("s_lshl_b32 s6, s3, 4")
    e("v_add_u32 v4, s6, v1")
    e("s_movk_i32 s4, %d" % XW)
    e("v_mul_lo_u32 v4, v4, s4")
    e("v_lshl_add_u32 v4, v2, 4, v4")
    e("v_add_u32 v4, %d, v4" % W1_OFF)
    for i in range(5):
        e("buffer_load_dwordx4 %s, v3, s[12:15], 0 offen offset:%d" % (vr(8 + 4 * i, 4), 256 * i))
    e("s_waitcnt vmcnt(0)")
    for i in range(5):
        e("buffer_store_dwordx4 %s, v4, s[8:11], 0 offen offset:%d" % (vr(8 + 4 * i, 4), 256 * i))
    e("s_endpgm")

    e.label("k0_tw1")
    e("s_sub_u32 s3, s2, %d" % (K0_LN + K0_CPB))
    srd(e, 12, 32, 33, D * F * 2)
    e("s_mov_b32 s16, 0xaaaaaab")
    e("s_mul_hi_u32 s17, s3, s16")
    e("s_mul_i32 s18, s17, 24")
    e("s_sub_u32 s18, s3, s18")
    e("s_movk_i32 s4, %d" % (F * 2))
    e("s_movk_i32 s5, %d" % XW)
    e("s_mul_i32 s6, s17, %d" % (64 * F * 2))
    e("s_lshl_b32 s19, s18, 7")
    e("s_add_u32 s6, s6, s19")
    e("s_mul_i32 s7, s18, %d" % (64 * XW))
    e("s_lshl_b32 s19, s17, 7")
    e("s_add_u32 s7, s7, s19")
    e("s_add_u32 s7, s7, %d" % W1_OFF)
    e("s_branch k0_tr")
    e.label("k0_tw2")
    e("s_sub_u32 s3, s2, %d" % (K0_LN + K0_CPB + K0_TW1 + K0_ILC))
    srd(e, 12, 34, 35, D * F * 2)
    e("s_mov_b32 s16, 0x1999999a")
    e("s_mul_hi_u32 s17, s3, s16")
    e("s_mul_i32 s18, s17, 10")
    e("s_sub_u32 s18, s3, s18")
    e("s_movk_i32 s4, %d" % XP)
    e("s_movk_i32 s5, %d" % W2P)
    e("s_mul_i32 s6, s17, %d" % (64 * XP))
    e("s_lshl_b32 s19, s18, 7")
    e("s_add_u32 s6, s6, s19")
    e("s_mul_i32 s7, s18, %d" % (64 * W2P))
    e("s_lshl_b32 s19, s17, 7")
    e("s_add_u32 s7, s7, s19")
    e("s_add_u32 s7, s7, %d" % W2_OFF)
    e.label("k0_tr")
    e("v_lshrrev_b32 v1, 2, v0")
    e("v_and_b32 v2, 3, v0")
    e("v_mul_lo_u32 v3, v1, s4")
    e("v_lshl_add_u32 v3, v2, 5, v3")
    e("v_add_u32 v3, s6, v3")
    e("buffer_load_dwordx4 v[8:11], v3, s[12:15], 0 offen")
    e("buffer_load_dwordx4 v[12:15], v3, s[12:15], 0 offen offset:16")
    e("v_mul_u32_u24 v4, 144, v1")
    e("v_lshl_add_u32 v4, v2, 5, v4")
    e("s_waitcnt vmcnt(0)")
    ts_stamp(e, 1, 0, 8, True)
    e("ds_write_b128 v4, v[8:11]")
    e("ds_write_b128 v4, v[12:15] offset:16")
    e("s_waitcnt lgkmcnt(0)")
    e("s_barrier")
    e("v_mul_u32_u24 v5, %d, v2" % (144 * 16))
    e("v_lshl_add_u32 v5, v1, 1, v5")
    for k in range(16):
        e("ds_read_u16 v%d, v5 offset:%d" % (24 + k, 144 * k))
    e("v_mul_lo_u32 v6, v1, s5")
    e("v_lshl_add_u32 v6, v2, 5, v6")
    e("v_add_u32 v6, s7, v6")
    e("s_waitcnt lgkmcnt(0)")
    for k in range(8):
        e("v_lshl_or_b32 v%d, v%d, 16, v%d" % (16 + k, 25 + 2 * k, 24 + 2 * k))
    e("buffer_store_dwordx4 v[16:19], v6, s[8:11], 0 offen")
    e("buffer_store_dwordx4 v[20:23], v6, s[8:11], 0 offen offset:16")
    ts_stamp(e, 2, 0, 8, True)
    e("s_waitcnt vmcnt(0)")
    ts_stamp(e, 3, 0, 8, True)
    e("s_endpgm")

    e.label("k0_ilc")
    e("s_sub_u32 s3, s2, %d" % (K0_LN + K0_CPB + K0_TW1))
    srd(e, 12, 28, 29, P * D * 2)
    srd(e, 16, 30, 31, P * D * 2)
    e("v_lshrrev_b32 v1, 4, v0")
    e("v_and_b32 v2, 15, v0")
    e("s_lshl_b32 s4, s3, 4")
    e("v_add_u32 v1, s4, v1")
    e("s_movk_i32 s5, %d" % XP)
    e("s_movk_i32 s6, %d" % HP)
    e("v_mul_lo_u32 v3, v1, s5")
    e("v_lshl_add_u32 v3, v2, 4, v3")
    e("v_mul_lo_u32 v4, v1, s6")
    e("v_lshl_add_u32 v4, v2, 5, v4")
    e("v_add_u32 v4, %d, v4" % W2_OFF)
    for i in range(5):
        e("buffer_load_dwordx4 %s, v3, s[12:15], 0 offen offset:%d" % (vr(8 + 8 * i, 4), 256 * i))
        e("buffer_load_dwordx4 %s, v3, s[16:19], 0 offen offset:%d" % (vr(12 + 8 * i, 4), 256 * i))
    e("s_mov_b32 s7, 0x05040100")
    e("s_mov_b32 s3, 0x07060302")
    e("s_waitcnt vmcnt(0)")
    for i in range(5):
        for k in range(4):
            re, im = 8 + 8 * i + k, 12 + 8 * i + k
            e("v_perm_b32 v%d, v%d, v%d, s7" % (48 + 8 * i + 2 * k, im, re))
            e("v_perm_b32 v%d, v%d, v%d, s3" % (48 + 8 * i + 2 * k + 1, im, re))
    for i in range(5):
        e("buffer_store_dwordx4 %s, v4, s[8:11], 0 offen offset:%d" % (vr(48 + 8 * i, 4), 512 * i))
        e("buffer_store_dwordx4 %s, v4, s[8:11], 0 offen offset:%d" % (vr(52 + 8 * i, 4), 512 * i + 16))
    e("s_endpgm")


def main():
    from gen_k1 import gen_k1, K1_LDS
    from gen_k2 import gen_k2, K2_LDS
    e = Em()
    e.raw(HEADER.rstrip("\n"))
    e.raw("; @launch kernel=k0_kernel grid=(%d,1,1) block=(256,1,1) lds=9216" % K0_GRID)
    e.raw("; @launch kernel=k1_kernel grid=(256,1,1) block=(384,1,1) lds=%d" % K1_LDS)
    e.raw("; @launch kernel=k2_kernel grid=(256,1,1) block=(256,1,1) lds=%d" % K2_LDS)
    e.raw('.amdgcn_target "amdgcn-amd-amdhsa--gfx950"')
    e.raw(".text")
    gen_k0(e)
    e.wt = True
    gen_k1(e)
    gen_k2(e)
    e.raw('.section .rodata,"a"')
    kernel_desc(e, "k0_kernel", vgpr=104, sgpr=48)
    kernel_desc(e, "k1_kernel", vgpr=256, sgpr=102)
    kernel_desc(e, "k2_kernel", vgpr=256, sgpr=102)
    out = sys.argv[1] if len(sys.argv) > 1 else "cdna_kernels/%s.s" % NAME
    open(out, "w").write(e.text())
    print("wrote", out, len(e.text()), "bytes")


if __name__ == "__main__":
    main()
```

```python
from gen import *
import os

NBUF = 4
NSTAGE = 10
S_BUF = 288 * 128
F_BUF = 320 * 128
K1_LDS = NBUF * F_BUF
TBL_OFF = NBUF * S_BUF
AGGL_OFF = 2 * S_BUF
CARL_OFF = AGGL_OFF + 16 * 80 * 8
SOP = 336
OUTL_OFF = 3 * S_BUF
FOP = 208
FOUT_OFF = 2 * F_BUF

S_WS = 8
S_BRE, S_BIM, S_B6 = 12, 16, 20
S_LRE, S_LIM, S_LDT = 24, 56, 60
S_W1 = 12
S_CB, S_RB, S_W = 30, 31, 32
S_K, S_K2 = 33, 35
S_T0, S_T1, S_VW = 34, 28, 29
S_ROWOFF = 40
LOG2E = 0x3FB8AA3B
INV2PI = 0x3E22F983


def loader_loop(e, bufsz, nslot, vD, slot_srd, slot_soff):
    def dma(s):
        buf = s % NBUF
        e("s_movk_i32 s%d, %d" % (S_K, 128 * s))
        e("s_mov_b32 s%d, %d" % (S_K2, 64 * F * 2 * s))
        for i in range(nslot):
            for vw in range(2):
                e("s_add_u32 m0, s%d, %d" % (S_T1 if vw else S_T0, buf * bufsz + i * 4096))
                e("s_nop 0")
                e("buffer_load_dwordx4 v%d, s[%d:%d], s%d offen lds" % (vD + vw * nslot + i, slot_srd[i], slot_srd[i] + 3, slot_soff[i]))
    n2 = 2 * nslot
    for s in range(3):
        dma(s)
    e("s_waitcnt vmcnt(%d)" % (2 * n2))
    e("s_barrier")
    for s in range(NSTAGE - 1):
        e("s_waitcnt vmcnt(%d)" % (n2 if s + 2 < NSTAGE else 0))
        e("s_barrier")
        if s + 3 < NSTAGE:
            dma(s + 3)
    e("s_endpgm")


def main_loop(e, reads, nacc_a, nacc_b, fragA, fragB, ACC, swap):
    def mfmas(setid, first):
        out = []
        for i in range(nacc_a):
            for j in range(nacc_b):
                acc = ACC + (i * nacc_b + j) * 4
                a, b = fragA(setid, i), fragB(setid, j)
                if swap:
                    a, b = b, a
                c = "0" if first else vr(acc, 4)
                out.append("v_mfma_f32_16x16x32_bf16 %s, %s, %s, %s" % (vr(acc, 4), vr(a, 4), vr(b, 4), c))
        return out

    def interleave(mf, extra):
        k = 0
        for m in mf:
            e(m)
            if k < len(extra):
                e(extra[k])
                k += 1
        while k < len(extra):
            e(extra[k])
            k += 1

    e("s_barrier")
    ts_stamp(e, 1, 1, S_WS)
    for r in reads(0, 0, 0):
        e(r)
    for s in range(NSTAGE):
        e("s_waitcnt lgkmcnt(0)")
        interleave(mfmas(0, s == 0), reads(s, 1, 1))
        extra = []
        if s + 1 < NSTAGE:
            e("s_barrier")
            extra = reads(s + 1, 0, 0)
        e("s_waitcnt lgkmcnt(0)")
        interleave(mfmas(1, False), extra)
        ts_stamp(e, 2 + s, 1, S_WS)


def lane_rows(e, sw):
    e("s_and_b32 s37, s%d, 1" % sw)
    e("s_lshl_b32 s38, s37, 2")
    e("v_add_u32 v5, s38, v4")
    e("v_and_b32 v5, 7, v5")
    e("v_and_b32 v6, 7, v2")
    e("v_xor_b32 v5, v5, v6")
    e("v_lshlrev_b32 v5, 4, v5")
    e("v_lshrrev_b32 v6, 3, v2")
    e("s_lshl_b32 s38, s%d, 3" % sw)
    e("v_add_u32 v7, s38, v6")
    e("v_lshrrev_b32 v8, 5, v2")
    e("s_lshl_b32 s38, s37, 1")
    e("v_add_u32 v8, s38, v8")
    e("v_lshlrev_b32 v8, 3, v8")
    e("v_and_b32 v9, 3, v6")
    e("v_add_u32 v8, v8, v9")
    e("s_lshr_b32 s38, s%d, 1" % sw)
    e("s_lshl_b32 s38, s38, 2")
    e("v_add_u32 v8, s38, v8")


def lds_read_addrs(e, base_v, rowbase_v, bufsz):
    for ks in range(2):
        e("v_lshrrev_b32 v5, 1, v3")
        e("v_or_b32 v6, %d, v4" % (4 * ks))
        e("v_xor_b32 v5, v5, v6")
        e("v_lshlrev_b32 v5, 4, v5")
        e("v_lshl_add_u32 v5, v3, 7, v5")
        e("v_add_u32 v5, v5, v%d" % rowbase_v)
        for b in range(NBUF):
            e("v_add_u32 v%d, %d, v5" % (base_v + ks * NBUF + b, b * bufsz))


def cmul(e, dr, di, ar, ai, br, bi, t):
    e("v_mul_f32 v%d, v%d, v%d" % (t, ar, br))
    e("v_mul_f32 v%d, v%d, v%d" % (t + 1, ar, bi))
    e("v_fma_f32 v%d, -v%d, v%d, v%d" % (t, ai, bi, t))
    e("v_fma_f32 v%d, v%d, v%d, v%d" % (t + 1, ai, br, t + 1))
    e("v_mov_b32 v%d, v%d" % (dr, t))
    e("v_mov_b32 v%d, v%d" % (di, t + 1))


def gen_k1(e):
    kernel_begin(e, "k1_kernel")
    e("s_cmp_ge_u32 s2, 256")
    e("s_cbranch_scc1 k1_exit")
    e("s_load_dwordx8 s[64:71], s[0:1], 8")
    e("s_load_dwordx2 s[76:77], s[0:1], 56")
    e("s_load_dwordx2 s[78:79], s[0:1], 80")
    e("s_load_dwordx2 s[80:81], s[0:1], 112")
    e("v_lshrrev_b32 v1, 6, v0")
    e("v_and_b32 v2, 63, v0")
    e("v_readfirstlane_b32 s%d, v1" % S_W)
    e("v_and_b32 v3, 15, v0")
    e("v_lshrrev_b32 v4, 4, v2")
    if int(os.environ.get("GEN_MAP", "0")):
        e("s_and_b32 s%d, s2, 7" % S_RB)
        e("s_lshl_b32 s%d, s%d, 1" % (S_RB, S_RB))
        e("s_lshr_b32 s34, s2, 7")
        e("s_add_u32 s%d, s%d, s34" % (S_RB, S_RB))
        e("s_lshr_b32 s%d, s2, 4" % S_CB)
        e("s_and_b32 s%d, s%d, 7" % (S_CB, S_CB))
    else:
        e("s_and_b32 s%d, s2, 7" % S_CB)
        e("s_lshr_b32 s%d, s2, 4" % S_RB)
    e("s_movk_i32 s36, %d" % XW)
    e("s_waitcnt lgkmcnt(0)")
    srd(e, S_WS, 80, 81, WS_USED)
    ts_stamp(e, 0, 1, S_WS)
    e("s_cmp_ge_u32 s%d, 4" % S_W)
    e("s_cbranch_scc1 k1_loader")
    e("s_bitcmp1_b32 s2, 3")
    e("s_cbranch_scc1 k1_ffn")

    VD = 10
    VA = 20
    VB = 28
    FR = 40
    ACC = 136
    srd(e, S_LRE, 64, 65, P * 2)
    srd(e, S_LIM, 66, 67, P * 2)
    srd(e, S_LDT, 76, 77, P * 2)
    e("s_mul_i32 s37, s%d, 80" % S_CB)
    e("v_add_u32 v9, s37, v0")
    e("v_lshlrev_b32 v9, 1, v9")
    e("buffer_load_ushort v40, v9, s[%d:%d], 0 offen" % (S_LRE, S_LRE + 3))
    e("buffer_load_ushort v41, v9, s[%d:%d], 0 offen" % (S_LIM, S_LIM + 3))
    e("buffer_load_ushort v42, v9, s[%d:%d], 0 offen" % (S_LDT, S_LDT + 3))

    def ssm_hook():
        e("s_lshl_b32 s37, s%d, 12" % S_W)
        e("v_mov_b32 v36, s37")
        lds_read_addrs(e, VA, 36, S_BUF)
        e("v_mov_b32 v36, %d" % (128 * 128))
        lds_read_addrs(e, VB, 36, S_BUF)
        e("s_waitcnt vmcnt(0)")
        e("v_lshlrev_b32 v40, 16, v40")
        e("v_lshlrev_b32 v41, 16, v41")
        e("v_lshlrev_b32 v42, 16, v42")
        e("s_mov_b32 s37, 0x%x" % LOG2E)
        e("s_mov_b32 s38, 0x%x" % INV2PI)
        e("v_mul_f32 v42, s37, v42")
        e("v_exp_f32 v42, v42")
        e.nop(1)
        rne_bf16(e, 42, 42)
        e("v_mul_f32 v43, v42, v40")
        e("v_mul_f32 v44, v42, v41")
        e("v_mul_f32 v43, s37, v43")
        e("v_exp_f32 v43, v43")
        e("v_mul_f32 v44, s38, v44")
        e("v_rndne_f32 v45, v44")
        e("v_sub_f32 v44, v44, v45")
        e("v_sin_f32 v45, v44")
        e("v_cos_f32 v46, v44")
        e.nop(1)
        e("v_mul_f32 v48, v43, v46")
        e("v_mul_f32 v49, v43, v45")
        e("v_add_f32 v45, -1.0, v48")
        e("v_mul_f32 v46, v40, v40")
        e("v_fma_f32 v46, v41, v41, v46")
        e("v_rcp_f32 v47, v46")
        e("v_mul_f32 v50, v45, v40")
        e("v_fma_f32 v50, v49, v41, v50")
        e("v_mul_f32 v51, v49, v40")
        e("v_fma_f32 v51, -v45, v41, v51")
        e("v_add_f32 v47, v47, v47")
        e("v_mul_f32 v50, v50, v47")
        e("v_mul_f32 v51, v51, v47")
        e("v_mov_b32 v52, v48")
        e("v_mov_b32 v53, v49")
        for _ in range(3):
            cmul(e, 52, 53, 52, 53, 52, 53, 56)
        e("v_mov_b32 v54, v52")
        e("v_mov_b32 v55, v53")
        for _ in range(4):
            cmul(e, 54, 55, 54, 55, 54, 55, 56)
        e("v_lshlrev_b32 v9, 5, v0")
        e("v_add_u32 v9, %d, v9" % TBL_OFF)
        e("ds_write_b128 v9, v[48:51]")
        e("ds_write_b128 v9, v[52:55] offset:16")
        e("s_waitcnt lgkmcnt(0)")

    def s_frag(setid, i):
        return FR + (setid * 12 + i) * 4

    def s_reads(s, ks, setid):
        buf = s % NBUF
        out = []
        for i in range(2):
            out.append("ds_read_b128 %s, v%d offset:%d" % (vr(s_frag(setid, i), 4), VA + ks * NBUF + buf, i * 2048))
        for j in range(10):
            out.append("ds_read_b128 %s, v%d offset:%d" % (vr(s_frag(setid, 2 + j), 4), VB + ks * NBUF + buf, j * 2048))
        return out

    ssm_hook()
    main_loop(e, s_reads, 2, 10, s_frag, lambda st, j: s_frag(st, 2 + j), ACC, False)

    def ur(j, s):
        return ACC + ((s >> 2) * 10 + j) * 4 + (s & 3)

    def ui(j, s):
        return ACC + ((s >> 2) * 10 + 5 + j) * 4 + (s & 3)

    CST = 40
    HST = 60
    TMP = 70
    e("v_lshlrev_b32 v9, 5, v3")
    e("v_add_u32 v9, %d, v9" % TBL_OFF)
    for j in range(5):
        e("ds_read_b128 %s, v9 offset:%d" % (vr(CST + 4 * j, 4), j * 512))
    e.nop(8)
    e("s_waitcnt lgkmcnt(0)")
    for j in range(5):
        e("v_mov_b32 v%d, v%d" % (HST + 2 * j, ur(j, 0)))
        e("v_mov_b32 v%d, v%d" % (HST + 2 * j + 1, ui(j, 0)))
    for s in range(1, 8):
        for j in range(5):
            hr, hi = HST + 2 * j, HST + 2 * j + 1
            ai = CST + 4 * j + 1
            t = TMP + 2 * j
            e("v_fma_f32 v%d, -v%d, v%d, v%d" % (t, ai, hi, ur(j, s)))
            e("v_fma_f32 v%d, v%d, v%d, v%d" % (t + 1, ai, hr, ui(j, s)))
        for j in range(5):
            hr, hi = HST + 2 * j, HST + 2 * j + 1
            ar = CST + 4 * j
            t = TMP + 2 * j
            e("v_fma_f32 v%d, v%d, v%d, v%d" % (hr, ar, hr, t))
            e("v_fma_f32 v%d, v%d, v%d, v%d" % (hi, ar, hi, t + 1))
    e("s_lshl_b32 s37, s%d, 2" % S_W)
    e("v_add_u32 v80, s37, v4")
    e("v_mul_u32_u24 v80, 80, v80")
    e("v_add_u32 v80, v80, v3")
    e("v_lshlrev_b32 v80, 3, v80")
    e("v_add_u32 v81, %d, v80" % AGGL_OFF)
    for j in range(5):
        e("ds_write_b64 v81, %s offset:%d" % (vr(HST + 2 * j, 2), j * 128))
    e("s_waitcnt lgkmcnt(0)")
    e("s_barrier")
    ts_stamp(e, 12, 1, S_WS)
    e("v_cmp_gt_u32 vcc, 80, v0")
    e("s_and_saveexec_b64 s[48:49], vcc")
    e("s_cbranch_execz k1s_nocomb")
    AG = 84
    e("v_lshlrev_b32 v82, 5, v0")
    e("v_add_u32 v82, %d, v82" % TBL_OFF)
    e("ds_read_b128 v[116:119], v82 offset:16")
    e("v_lshlrev_b32 v82, 3, v0")
    e("v_add_u32 v83, %d, v82" % AGGL_OFF)
    for q in range(16):
        e("ds_read_b64 %s, v83 offset:%d" % (vr(AG + 2 * q, 2), q * 640))
    e("s_waitcnt lgkmcnt(0)")
    e("v_mov_b32 v120, v%d" % AG)
    e("v_mov_b32 v121, v%d" % (AG + 1))
    for q in range(1, 16):
        e("v_fma_f32 v122, -v117, v121, v%d" % (AG + 2 * q))
        e("v_fma_f32 v123, v117, v120, v%d" % (AG + 2 * q + 1))
        e("v_fma_f32 v120, v116, v120, v122")
        e("v_fma_f32 v121, v116, v121, v123")
    e("s_mul_i32 s37, s%d, 80" % S_CB)
    e("v_add_u32 v124, s37, v0")
    e("v_lshlrev_b32 v124, 3, v124")
    e("v_add_u32 v124, %d, v124" % AGG_OFF)
    e("s_mul_i32 s37, s%d, %d" % (S_RB, P * 8))
    e("buffer_store_dwordx2 v[120:121], v124, s[%d:%d], s37 offen sc1" % (S_WS, S_WS + 3))
    e.nop(2)
    e("v_mov_b32 v120, 0")
    e("v_mov_b32 v121, 0")
    e("s_cmp_eq_u32 s%d, 0" % S_RB)
    e("s_cbranch_scc1 k1s_nocarry")
    PG = 216
    e("s_mov_b32 s52, 0")
    e.label("k1s_poll")
    e("v_mov_b32 v125, v124")
    for c in range(15):
        e("buffer_load_dwordx2 %s, v125, s[%d:%d], 0 offen sc1" % (vr(PG + 2 * c, 2), S_WS, S_WS + 3))
        if c < 14:
            e("v_add_u32 v125, %d, v125" % (P * 8))
    e("s_waitcnt vmcnt(0)")
    e("s_mov_b64 s[54:55], 0")
    for c in range(15):
        e("s_cmp_gt_u32 s%d, %d" % (S_RB, c))
        e("s_cbranch_scc0 k1s_chk")
        e("v_cmp_eq_u32 vcc, -1, v%d" % (PG + 2 * c))
        e("s_or_b64 s[54:55], s[54:55], vcc")
        e("v_cmp_eq_u32 vcc, -1, v%d" % (PG + 2 * c + 1))
        e("s_or_b64 s[54:55], s[54:55], vcc")
    e.label("k1s_chk")
    e("s_cmp_eq_u64 s[54:55], 0")
    e("s_cbranch_scc1 k1s_polled")
    e("s_sleep 4")
    e("s_add_u32 s52, s52, 1")
    e("s_cmp_lt_u32 s52, 0x40000")
    e("s_cbranch_scc1 k1s_poll")
    e.label("k1s_polled")
    ts_stamp(e, 13, 1, S_WS)
    for c in range(15):
        e("s_cmp_gt_u32 s%d, %d" % (S_RB, c))
        e("s_cbranch_scc0 k1s_nocarry")
        e("v_fma_f32 v122, -v119, v121, v%d" % (PG + 2 * c))
        e("v_fma_f32 v123, v119, v120, v%d" % (PG + 2 * c + 1))
        e("v_fma_f32 v120, v118, v120, v122")
        e("v_fma_f32 v121, v118, v121, v123")
    e.label("k1s_nocarry")
    e("v_add_u32 v83, %d, v82" % CARL_OFF)
    for q in range(16):
        e("ds_write_b64 v83, v[120:121] offset:%d" % (q * 640))
        if q < 15:
            e("v_fma_f32 v122, -v117, v121, v%d" % (AG + 2 * q))
            e("v_fma_f32 v123, v117, v120, v%d" % (AG + 2 * q + 1))
            e("v_fma_f32 v120, v116, v120, v122")
            e("v_fma_f32 v121, v116, v121, v123")
    e.label("k1s_nocomb")
    e("s_mov_b64 exec, s[48:49]")
    e("s_waitcnt lgkmcnt(0)")
    e("s_barrier")
    ts_stamp(e, 14, 1, S_WS)
    e("v_add_u32 v81, %d, v80" % CARL_OFF)
    for j in range(5):
        e("ds_read_b64 %s, v81 offset:%d" % (vr(HST + 2 * j, 2), j * 128))
    e("s_mul_i32 s37, s%d, %d" % (S_W, 32 * SOP + 128))
    e("s_add_u32 s37, s37, %d" % OUTL_OFF)
    e("v_mul_u32_u24 v82, %d, v4" % (8 * SOP + 32))
    e("v_lshl_add_u32 v82, v3, 1, v82")
    e("v_add_u32 v82, s37, v82")
    e("s_waitcnt lgkmcnt(0)")
    for s in range(8):
        for j in range(5):
            hr, hi = HST + 2 * j, HST + 2 * j + 1
            ai = CST + 4 * j + 1
            t = TMP + 2 * j
            e("v_fma_f32 v%d, -v%d, v%d, v%d" % (t, ai, hi, ur(j, s)))
            e("v_fma_f32 v%d, v%d, v%d, v%d" % (t + 1, ai, hr, ui(j, s)))
        for j in range(5):
            hr, hi = HST + 2 * j, HST + 2 * j + 1
            ar = CST + 4 * j
            t = TMP + 2 * j
            e("v_fma_f32 v%d, v%d, v%d, v%d" % (hr, ar, hr, t))
            e("v_fma_f32 v%d, v%d, v%d, v%d" % (hi, ar, hi, t + 1))
        for j in range(5):
            hr, hi = HST + 2 * j, HST + 2 * j + 1
            cr = CST + 4 * j + 2
            e("v_mul_f32 v%d, v%d, v%d" % (ur(j, s), cr, hr))
            e("v_mul_f32 v%d, -v%d, v%d" % (ui(j, s), cr, hi))
        for j in range(5):
            hr, hi = HST + 2 * j, HST + 2 * j + 1
            ci = CST + 4 * j + 3
            e("v_fma_f32 v%d, -v%d, v%d, v%d" % (ur(j, s), ci, hi, ur(j, s)))
            e("v_fma_f32 v%d, -v%d, v%d, v%d" % (ui(j, s), ci, hr, ui(j, s)))
    PK = 84
    for part, uf in enumerate((ur, ui)):
        for j in range(5):
            o = PK + (part * 5 + j) * 4
            for k in range(4):
                e("v_cvt_pk_bf16_f32 v%d, v%d, v%d" % (o + k, uf(j, 2 * k), uf(j, 2 * k + 1)))
            for k in range(4):
                off = part * 160 + 32 * j
                e("ds_write_b16 v82, v%d offset:%d" % (o + k, 2 * k * SOP + off))
                e("ds_write_b16_d16_hi v82, v%d offset:%d" % (o + k, (2 * k + 1) * SOP + off))
    e("s_mov_b32 s38, 0xccccccd")
    e("s_lshl_b32 s39, s%d, 7" % S_RB)
    e("s_lshl_b32 s40, s%d, 5" % S_W)
    e("s_add_u32 s39, s39, s40")
    e("s_mul_i32 s40, s%d, 160" % S_CB)
    e("s_add_u32 s40, s40, %d" % H_OFF)
    e("s_movk_i32 s41, %d" % HP)
    RD = 136
    GA = 124
    e("s_waitcnt lgkmcnt(0)")
    for i in range(10):
        e("v_add_u32 v70, %d, v2" % (64 * i))
        e("v_mul_hi_u32 v71, v70, s38")
        e("v_mul_u32_u24 v72, 20, v71")
        e("v_sub_u32 v72, v70, v72")
        e("v_mul_u32_u24 v73, %d, v71" % SOP)
        e("v_lshl_add_u32 v73, v72, 4, v73")
        e("v_lshrrev_b32 v74, 3, v71")
        e("v_lshl_add_u32 v73, v74, 5, v73")
        e("v_add_u32 v73, s37, v73")
        e("ds_read_b128 %s, v73" % vr(RD + 4 * i, 4))
        e("v_add_u32 v71, s39, v71")
        e("v_mul_lo_u32 v71, v71, s41")
        e("v_lshl_add_u32 v71, v72, 4, v71")
        e("v_cmp_lt_u32 vcc, 9, v72")
        e("v_mov_b32 v74, 0")
        e("v_mov_b32 v75, %d" % (1280 - 160))
        e("v_cndmask_b32 v74, v74, v75, vcc")
        e("v_add3_u32 v%d, v71, v74, s40" % (GA + i))
    e("s_waitcnt lgkmcnt(0)")
    e.wt = bool(int(os.environ.get("GEN_WT_S", "1")))
    for i in range(10):
        e("buffer_store_dwordx4 %s, v%d, s[%d:%d], 0 offen" % (vr(RD + 4 * i, 4), GA + i, S_WS, S_WS + 3))
    e.wt = True
    ts_stamp(e, 15, 1, S_WS)
    e("s_waitcnt vmcnt(0)")
    ts_stamp(e, 16, 1, S_WS)
    e("s_endpgm")

    e.label("k1_ffn")
    VD = 10
    VA = 20
    VT = 28
    FR = 40
    ACC = 120
    def ffn_hook():
        e("s_lshr_b32 s37, s%d, 1" % S_W)
        e("s_lshl_b32 s37, s37, 13")
        e("v_mov_b32 v36, s37")
        lds_read_addrs(e, VA, 36, F_BUF)
        e("v_lshrrev_b32 v5, 2, v3")
        e("v_and_b32 v6, 3, v3")
        e("v_mul_u32_u24 v7, 3072, v4")
        e("v_lshl_add_u32 v7, v5, 7, v7")
        e("v_lshl_add_u32 v7, v6, 3, v7")
        e("v_lshrrev_b32 v8, 1, v5")
        e("v_and_b32 v9, 1, v4")
        e("v_lshl_or_b32 v8, v9, 1, v8")
        e("s_and_b32 s37, s%d, 1" % S_W)
        e("s_mul_i32 s37, s37, 6")
        for b in range(6):
            e("s_add_u32 s38, s37, %d" % b)
            e("s_and_b32 s39, s38, 3")
            e("s_lshr_b32 s38, s38, 2")
            e("s_lshl_b32 s38, s38, 10")
            e("s_add_u32 s38, s38, %d" % (128 * 128))
            e("v_xor_b32 v5, s39, v8")
            e("v_lshl_add_u32 v5, v5, 5, v7")
            e("v_add_u32 v%d, s38, v5" % (VT + b))
            e("v_add_u32 v%d, %d, v%d" % (VT + 6 + b, 2 * F_BUF, VT + b))

    def f_frag(setid, i):
        return FR + (setid * 10 + i) * 4

    def f_reads(s, ks, setid):
        buf = s % NBUF
        out = []
        for i in range(4):
            out.append("ds_read_b128 %s, v%d offset:%d" % (vr(f_frag(setid, i), 4), VA + ks * NBUF + buf, i * 2048))
        for b in range(6):
            for h in range(2):
                out.append("ds_read_b64_tr_b16 %s, v%d offset:%d" % (vr(f_frag(setid, 4 + b) + 2 * h, 2), VT + 6 * (buf >> 1) + b,
                                                                   (buf & 1) * F_BUF + ks * 12288 + h * 512))
        return out

    ffn_hook()
    main_loop(e, f_reads, 4, 6, f_frag, lambda st, j: f_frag(st, 4 + j), ACC, True)

    e("s_mul_i32 s37, s%d, %d" % (S_W, 64 * FOP))
    e("s_add_u32 s37, s37, %d" % FOUT_OFF)
    e("v_mul_u32_u24 v40, %d, v3" % FOP)
    e("v_lshl_add_u32 v40, v4, 3, v40")
    e("v_add_u32 v40, s37, v40")
    e("s_mov_b32 s48, 0xbfb8aa3b")
    e.nop(8)
    T = 44
    for a in range(4):
        for m in range(3):
            src = [ACC + (a * 6 + 2 * m) * 4 + r for r in range(4)] + [ACC + (a * 6 + 2 * m + 1) * 4 + r for r in range(4)]
            tb = T + ((a * 3 + m) & 1) * 24
            for k in range(4):
                e("v_cvt_pk_bf16_f32 v%d, v%d, v%d" % (tb + 16 + k, src[2 * k], src[2 * k + 1]))
            for k in range(4):
                e("v_lshlrev_b32 v%d, 16, v%d" % (tb + 2 * k, tb + 16 + k))
                e("v_and_b32 v%d, 0xffff0000, v%d" % (tb + 2 * k + 1, tb + 16 + k))
            for k in range(8):
                e("v_mul_f32 v%d, s48, v%d" % (tb + 8 + k, tb + k))
            for k in range(8):
                e("v_exp_f32 v%d, v%d" % (tb + 8 + k, tb + 8 + k))
            for k in range(8):
                e("v_add_f32 v%d, 1.0, v%d" % (tb + 8 + k, tb + 8 + k))
            for k in range(8):
                e("v_rcp_f32 v%d, v%d" % (tb + 8 + k, tb + 8 + k))
            for k in range(8):
                e("v_mul_f32 v%d, v%d, v%d" % (tb + k, tb + k, tb + 8 + k))
            for k in range(4):
                e("v_cvt_pk_bf16_f32 v%d, v%d, v%d" % (tb + 20 + k, tb + 2 * k, tb + 2 * k + 1))
            e("ds_write_b64 v40, %s offset:%d" % (vr(tb + 20, 2), 16 * a * FOP + 64 * m))
            e("ds_write_b64 v40, %s offset:%d" % (vr(tb + 22, 2), 16 * a * FOP + 64 * m + 32))
    e("s_mov_b32 s38, 0x15555556")
    e("s_lshl_b32 s39, s%d, 7" % S_RB)
    e("s_lshr_b32 s40, s%d, 1" % S_W)
    e("s_lshl_b32 s40, s40, 6")
    e("s_add_u32 s39, s39, s40")
    e("s_mul_i32 s40, s%d, 384" % S_CB)
    e("s_and_b32 s41, s%d, 1" % S_W)
    e("s_mul_i32 s41, s41, 192")
    e("s_add_u32 s40, s40, s41")
    e("s_add_u32 s40, s40, %d" % (H_OFF + 2 * P * 2))
    e("s_movk_i32 s41, %d" % HP)
    RD = 120
    GA = 100
    e("s_waitcnt lgkmcnt(0)")
    for i in range(12):
        e("v_add_u32 v92, %d, v2" % (64 * i))
        e("v_mul_hi_u32 v93, v92, s38")
        e("v_mul_u32_u24 v94, 12, v93")
        e("v_sub_u32 v94, v92, v94")
        e("v_mul_u32_u24 v95, %d, v93" % FOP)
        e("v_lshl_add_u32 v95, v94, 4, v95")
        e("v_add_u32 v95, s37, v95")
        e("ds_read_b128 %s, v95" % vr(RD + 4 * i, 4))
        e("v_add_u32 v93, s39, v93")
        e("v_mul_lo_u32 v93, v93, s41")
        e("v_lshl_add_u32 v93, v94, 4, v93")
        e("v_add_u32 v%d, s40, v93" % (GA + i))
    e("s_waitcnt lgkmcnt(0)")
    e.wt = bool(int(os.environ.get("GEN_WT_F", "1")))
    for i in range(12):
        e("buffer_store_dwordx4 %s, v%d, s[%d:%d], 0 offen" % (vr(RD + 4 * i, 4), GA + i, S_WS, S_WS + 3))
    e.wt = True
    ts_stamp(e, 15, 1, S_WS)
    e("s_waitcnt vmcnt(0)")
    ts_stamp(e, 16, 1, S_WS)
    e.label("k1_exit")
    e("s_endpgm")

    e.label("k1_loader")
    e("s_sub_u32 s39, s%d, 4" % S_W)
    e("s_lshl_b32 s39, s39, 1")
    e("s_lshl_b32 s%d, s39, 10" % S_T0)
    e("s_add_u32 s%d, s%d, 1024" % (S_T1, S_T0))
    e("s_bitcmp1_b32 s2, 3")
    e("s_cbranch_scc1 k1_ldf")
    VD = 10
    srd(e, S_BRE, 68, 69, P * D * 2)
    srd(e, S_BIM, 70, 71, P * D * 2)
    e("s_cmp_ge_u32 s39, 2")
    e("s_cselect_b32 s%d, s70, s68" % S_B6)
    e("s_cselect_b32 s%d, s71, s69" % (S_B6 + 1))
    e("s_cselect_b32 s40, %d, 0" % (80 * XP))
    e("s_and_b32 s%d, s%d, 0xffff" % (S_B6 + 1, S_B6 + 1))
    e("s_mov_b32 s%d, %d" % (S_B6 + 2, P * D * 2))
    e("s_mov_b32 s%d, 0x00020000" % (S_B6 + 3))
    for vw in range(2):
        vd = VD + vw * 9
        e("s_add_u32 s%d, s39, %d" % (S_VW, vw))
        lane_rows(e, S_VW)
        e("s_lshl_b32 s37, s%d, 7" % S_RB)
        e("v_add_u32 v9, s37, v8")
        e("v_mul_lo_u32 v9, v9, s36")
        e("v_add_u32 v9, v9, v5")
        for i in range(4):
            e("v_add_u32 v%d, %d, v9" % (vd + i, XN_OFF + i * 32 * XW))
        e("s_mul_i32 s37, s%d, 80" % S_CB)
        e("v_add_u32 v9, s37, v7")
        e("s_movk_i32 s37, %d" % XP)
        e("v_mul_lo_u32 v9, v9, s37")
        e("v_add_u32 v9, v9, v5")
        e("v_mov_b32 v%d, v9" % (vd + 4))
        e("v_add_u32 v%d, %d, v9" % (vd + 5, 32 * XP))
        e("v_add_u32 v%d, %d, v9" % (vd + 6, 64 * XP))
        e("v_subrev_u32 v%d, s40, v%d" % (vd + 6, vd + 6))
        e("v_add_u32 v%d, %d, v9" % (vd + 7, (96 - 80) * XP))
        e("v_add_u32 v%d, %d, v9" % (vd + 8, (128 - 80) * XP))
    loader_loop(e, S_BUF, 9, VD, [S_WS] * 4 + [S_BRE, S_BRE, S_B6, S_BIM, S_BIM], [S_K] * 9)
    e.label("k1_ldf")
    srd(e, S_W1, 78, 79, D * F * 2)
    for vw in range(2):
        vd = VD + vw * 10
        e("s_add_u32 s%d, s39, %d" % (S_VW, vw))
        lane_rows(e, S_VW)
        e("s_lshl_b32 s37, s%d, 7" % S_RB)
        e("v_add_u32 v9, s37, v7")
        e("v_mul_lo_u32 v9, v9, s36")
        e("v_add_u32 v9, v9, v5")
        for i in range(4):
            e("v_add_u32 v%d, %d, v9" % (vd + i, XN_OFF + i * 32 * XW))
        e("v_and_b32 v7, 7, v2")
        e("v_lshrrev_b32 v8, 1, v6")
        e("v_and_b32 v8, 1, v8")
        e("s_movk_i32 s37, %d" % (F * 2))
        e("v_mul_lo_u32 v9, v6, s37")
        e("s_mul_i32 s38, s%d, 384" % S_CB)
        for i in range(6):
            e("s_add_u32 s43, s%d, %d" % (S_VW, 4 * i))
            e("s_mul_i32 s40, s43, 43691")
            e("s_lshr_b32 s40, s40, 17")
            e("s_mul_i32 s41, s40, 3")
            e("s_sub_u32 s41, s43, s41")
            e("s_and_b32 s42, s40, 1")
            e("s_lshl_b32 s42, s42, 1")
            e("v_or_b32 v5, s42, v8")
            e("v_lshlrev_b32 v5, 1, v5")
            e("v_xor_b32 v5, v5, v7")
            e("v_lshl_add_u32 v5, v5, 4, v9")
            e("s_mul_i32 s40, s40, %d" % (8 * F * 2))
            e("s_lshl_b32 s41, s41, 7")
            e("s_add_u32 s40, s40, s41")
            e("s_add_u32 s40, s40, s38")
            e("v_add_u32 v%d, s40, v5" % (vd + 4 + i))
    loader_loop(e, F_BUF, 10, VD, [S_WS] * 4 + [S_W1] * 6, [S_K] * 4 + [S_K2] * 6)
```

```python
from gen import *
import os

NSTAGE = 10
NJ = 4
PB = 16 * NJ
S_NB, F_NB = 4, 3
S_BUF = (128 + 2 * PB) * 128
F_BUF = (128 + 256) * 128
K1_LDS = 163840
TBL_OFF = S_NB * S_BUF
AGGL_OFF = 2 * S_BUF
CARL_OFF = AGGL_OFF + 16 * PB * 8
SOP = 4 * PB + 16
OUTL_OFF = 3 * S_BUF
FOP = 272

S_WS = 8
S_BRE, S_BIM = 12, 16
S_LRE, S_LIM, S_LDT = 24, 56, 60
S_W1 = 12
S_CB, S_RB, S_W = 30, 31, 32
S_K, S_K2 = 33, 35
S_T0, S_T1, S_VW = 34, 28, 29
LOG2E = 0x3FB8AA3B
INV2PI = 0x3E22F983


def loader_loop(e, nb, bufsz, nslot, vD, slot_srd, slot_soff):
    def dma(s):
        buf = s % nb
        e("s_movk_i32 s%d, %d" % (S_K, 128 * s))
        e("s_mov_b32 s%d, %d" % (S_K2, 64 * F * 2 * s))
        for i in range(nslot):
            for vw in range(2):
                e("s_add_u32 m0, s%d, %d" % (S_T1 if vw else S_T0, buf * bufsz + i * 4096))
                e("s_nop 0")
                e("buffer_load_dwordx4 v%d, s[%d:%d], s%d offen lds" % (vD + vw * nslot + i, slot_srd[i], slot_srd[i] + 3, slot_soff[i]))
    n2 = 2 * nslot
    pf = nb
    for s in range(pf):
        dma(s)
    e("s_waitcnt vmcnt(%d)" % min(63, (pf - 1) * n2))
    e("s_barrier")
    for s in range(NSTAGE - 1):
        inflight = min(s + pf - 1, NSTAGE - 1) - (s + 1)
        e("s_waitcnt vmcnt(%d)" % min(63, inflight * n2))
        e("s_barrier")
        if s + pf < NSTAGE:
            dma(s + pf)
    e("s_endpgm")


def main_loop(e, reads, nacc_a, nacc_b, fragA, fragB, ACC, swap):
    def mfmas(setid, first):
        out = []
        for i in range(nacc_a):
            for j in range(nacc_b):
                acc = ACC + (i * nacc_b + j) * 4
                a, b = fragA(setid, i), fragB(setid, j)
                if swap:
                    a, b = b, a
                c = "0" if first else vr(acc, 4)
                out.append("v_mfma_f32_16x16x32_bf16 %s, %s, %s, %s" % (vr(acc, 4), vr(a, 4), vr(b, 4), c))
        return out

    def interleave(mf, extra):
        k = 0
        for m in mf:
            e(m)
            if k < len(extra):
                e(extra[k])
                k += 1
        while k < len(extra):
            e(extra[k])
            k += 1

    e("s_barrier")
    ts_stamp(e, 1, 1, S_WS)
    for r in reads(0, 0, 0):
        e(r)
    for s in range(NSTAGE):
        e("s_waitcnt lgkmcnt(0)")
        interleave(mfmas(0, s == 0), reads(s, 1, 1))
        extra = []
        e("s_waitcnt lgkmcnt(0)")
        if s + 1 < NSTAGE:
            e("s_barrier")
            extra = reads(s + 1, 0, 0)
        interleave(mfmas(1, False), extra)
        ts_stamp(e, 2 + s, 1, S_WS)


def lane_rows(e, sw):
    e("s_and_b32 s37, s%d, 1" % sw)
    e("s_lshl_b32 s38, s37, 2")
    e("v_add_u32 v5, s38, v4")
    e("v_and_b32 v5, 7, v5")
    e("v_and_b32 v6, 7, v2")
    e("v_xor_b32 v5, v5, v6")
    e("v_lshlrev_b32 v5, 4, v5")
    e("v_lshrrev_b32 v6, 3, v2")
    e("s_lshl_b32 s38, s%d, 3" % sw)
    e("v_add_u32 v7, s38, v6")
    e("v_lshrrev_b32 v8, 5, v2")
    e("s_lshl_b32 s38, s37, 1")
    e("v_add_u32 v8, s38, v8")
    e("v_lshlrev_b32 v8, 3, v8")
    e("v_and_b32 v9, 3, v6")
    e("v_add_u32 v8, v8, v9")
    e("s_lshr_b32 s38, s%d, 1" % sw)
    e("s_lshl_b32 s38, s38, 2")
    e("v_add_u32 v8, s38, v8")


def lds_read_addrs(e, base_v, rowbase_v, bufsz, nb):
    for ks in range(2):
        e("v_lshrrev_b32 v5, 1, v3")
        e("v_or_b32 v6, %d, v4" % (4 * ks))
        e("v_xor_b32 v5, v5, v6")
        e("v_lshlrev_b32 v5, 4, v5")
        e("v_lshl_add_u32 v5, v3, 7, v5")
        e("v_add_u32 v5, v5, v%d" % rowbase_v)
        for b in range(nb):
            e("v_add_u32 v%d, %d, v5" % (base_v + ks * nb + b, b * bufsz))


def cmul(e, dr, di, ar, ai, br, bi, t):
    e("v_mul_f32 v%d, v%d, v%d" % (t, ar, br))
    e("v_mul_f32 v%d, v%d, v%d" % (t + 1, ar, bi))
    e("v_fma_f32 v%d, -v%d, v%d, v%d" % (t, ai, bi, t))
    e("v_fma_f32 v%d, v%d, v%d, v%d" % (t + 1, ai, br, t + 1))
    e("v_mov_b32 v%d, v%d" % (dr, t))
    e("v_mov_b32 v%d, v%d" % (di, t + 1))


def gen_k1(e):
    kernel_begin(e, "k1_kernel")
    e("s_cmp_ge_u32 s2, 256")
    e("s_cbranch_scc1 k1_exit")
    e("s_load_dwordx8 s[64:71], s[0:1], 8")
    e("s_load_dwordx2 s[76:77], s[0:1], 56")
    e("s_load_dwordx2 s[78:79], s[0:1], 80")
    e("s_load_dwordx2 s[80:81], s[0:1], 112")
    e("v_lshrrev_b32 v1, 6, v0")
    e("v_and_b32 v2, 63, v0")
    e("v_readfirstlane_b32 s%d, v1" % S_W)
    e("v_and_b32 v3, 15, v0")
    e("v_lshrrev_b32 v4, 4, v2")
    e("s_and_b32 s%d, s2, 7" % S_RB)
    e("s_lshl_b32 s%d, s%d, 1" % (S_RB, S_RB))
    e("s_lshr_b32 s34, s2, 7")
    e("s_add_u32 s%d, s%d, s34" % (S_RB, S_RB))
    e("s_lshr_b32 s%d, s2, 3" % S_CB)
    e("s_and_b32 s%d, s%d, 15" % (S_CB, S_CB))
    e("s_movk_i32 s36, %d" % XW)
    e("s_waitcnt lgkmcnt(0)")
    srd(e, S_WS, 80, 81, WS_USED)
    ts_stamp(e, 0, 1, S_WS)
    e("s_cmp_ge_u32 s%d, 4" % S_W)
    e("s_cbranch_scc1 k1_loader")
    e("s_cmp_ge_u32 s%d, 10" % S_CB)
    e("s_cbranch_scc1 k1_ffn")

    NBT = 2 * NJ
    VA = 20
    VB = 28
    FR = 40
    ACC = 136
    srd(e, S_LRE, 64, 65, P * 2)
    srd(e, S_LIM, 66, 67, P * 2)
    srd(e, S_LDT, 76, 77, P * 2)
    e("s_mul_i32 s37, s%d, %d" % (S_CB, PB))
    e("v_add_u32 v9, s37, v0")
    e("v_lshlrev_b32 v9, 1, v9")
    e("buffer_load_ushort v40, v9, s[%d:%d], 0 offen" % (S_LRE, S_LRE + 3))
    e("buffer_load_ushort v41, v9, s[%d:%d], 0 offen" % (S_LIM, S_LIM + 3))
    e("buffer_load_ushort v42, v9, s[%d:%d], 0 offen" % (S_LDT, S_LDT + 3))
    e("s_lshl_b32 s37, s%d, 12" % S_W)
    e("v_mov_b32 v36, s37")
    lds_read_addrs(e, VA, 36, S_BUF, S_NB)
    e("v_mov_b32 v36, %d" % (128 * 128))
    lds_read_addrs(e, VB, 36, S_BUF, S_NB)
    e("s_waitcnt vmcnt(0)")
    e("v_lshlrev_b32 v40, 16, v40")
    e("v_lshlrev_b32 v41, 16, v41")
    e("v_lshlrev_b32 v42, 16, v42")
    e("s_mov_b32 s37, 0x%x" % LOG2E)
    e("s_mov_b32 s38, 0x%x" % INV2PI)
    e("v_mul_f32 v42, s37, v42")
    e("v_exp_f32 v42, v42")
    e.nop(1)
    rne_bf16(e, 42, 42)
    e("v_mul_f32 v43, v42, v40")
    e("v_mul_f32 v44, v42, v41")
    e("v_mul_f32 v43, s37, v43")
    e("v_exp_f32 v43, v43")
    e("v_mul_f32 v44, s38, v44")
    e("v_rndne_f32 v45, v44")
    e("v_sub_f32 v44, v44, v45")
    e("v_sin_f32 v45, v44")
    e("v_cos_f32 v46, v44")
    e.nop(1)
    e("v_mul_f32 v48, v43, v46")
    e("v_mul_f32 v49, v43, v45")
    e("v_add_f32 v45, -1.0, v48")
    e("v_mul_f32 v46, v40, v40")
    e("v_fma_f32 v46, v41, v41, v46")
    e("v_rcp_f32 v47, v46")
    e("v_mul_f32 v50, v45, v40")
    e("v_fma_f32 v50, v49, v41, v50")
    e("v_mul_f32 v51, v49, v40")
    e("v_fma_f32 v51, -v45, v41, v51")
    e("v_add_f32 v47, v47, v47")
    e("v_mul_f32 v50, v50, v47")
    e("v_mul_f32 v51, v51, v47")
    e("v_mov_b32 v52, v48")
    e("v_mov_b32 v53, v49")
    for _ in range(3):
        cmul(e, 52, 53, 52, 53, 52, 53, 56)
    e("v_mov_b32 v54, v52")
    e("v_mov_b32 v55, v53")
    for _ in range(4):
        cmul(e, 54, 55, 54, 55, 54, 55, 56)
    e("v_lshlrev_b32 v9, 5, v0")
    e("v_add_u32 v9, %d, v9" % TBL_OFF)
    e("ds_write_b128 v9, v[48:51]")
    e("ds_write_b128 v9, v[52:55] offset:16")
    e("s_waitcnt lgkmcnt(0)")

    def s_frag(setid, i):
        return FR + (setid * (2 + NBT) + i) * 4

    def s_reads(s, ks, setid):
        buf = s % S_NB
        out = []
        for i in range(2):
            out.append("ds_read_b128 %s, v%d offset:%d" % (vr(s_frag(setid, i), 4), VA + ks * S_NB + buf, i * 2048))
        for j in range(NBT):
            out.append("ds_read_b128 %s, v%d offset:%d" % (vr(s_frag(setid, 2 + j), 4), VB + ks * S_NB + buf, j * 2048))
        return out

    main_loop(e, s_reads, 2, NBT, s_frag, lambda st, j: s_frag(st, 2 + j), ACC, False)

    def ur(j, s):
        return ACC + ((s >> 2) * NBT + j) * 4 + (s & 3)

    def ui(j, s):
        return ACC + ((s >> 2) * NBT + NJ + j) * 4 + (s & 3)

    CST = 40
    HST = 60
    TMP = 70
    e("v_lshlrev_b32 v9, 5, v3")
    e("v_add_u32 v9, %d, v9" % TBL_OFF)
    for j in range(NJ):
        e("ds_read_b128 %s, v9 offset:%d" % (vr(CST + 4 * j, 4), j * 512))
    e.nop(8)
    e("s_waitcnt lgkmcnt(0)")
    for j in range(NJ):
        e("v_mov_b32 v%d, v%d" % (HST + 2 * j, ur(j, 0)))
        e("v_mov_b32 v%d, v%d" % (HST + 2 * j + 1, ui(j, 0)))

    def scan_step(s):
        for j in range(NJ):
            hr, hi = HST + 2 * j, HST + 2 * j + 1
            ai = CST + 4 * j + 1
            t = TMP + 2 * j
            e("v_fma_f32 v%d, -v%d, v%d, v%d" % (t, ai, hi, ur(j, s)))
            e("v_fma_f32 v%d, v%d, v%d, v%d" % (t + 1, ai, hr, ui(j, s)))
        for j in range(NJ):
            hr, hi = HST + 2 * j, HST + 2 * j + 1
            ar = CST + 4 * j
            t = TMP + 2 * j
            e("v_fma_f32 v%d, v%d, v%d, v%d" % (hr, ar, hr, t))
            e("v_fma_f32 v%d, v%d, v%d, v%d" % (hi, ar, hi, t + 1))

    for s in range(1, 8):
        scan_step(s)
    e("s_lshl_b32 s37, s%d, 2" % S_W)
    e("v_add_u32 v80, s37, v4")
    e("v_mul_u32_u24 v80, %d, v80" % PB)
    e("v_add_u32 v80, v80, v3")
    e("v_lshlrev_b32 v80, 3, v80")
    e("v_add_u32 v81, %d, v80" % AGGL_OFF)
    for j in range(NJ):
        e("ds_write_b64 v81, %s offset:%d" % (vr(HST + 2 * j, 2), j * 128))
    e("s_waitcnt lgkmcnt(0)")
    e("s_barrier")
    ts_stamp(e, 12, 1, S_WS)
    e("s_cmp_lg_u32 s%d, 0" % S_W)
    e("s_cbranch_scc1 k1s_nocomb")
    AG = 84
    e("v_lshlrev_b32 v82, 5, v0")
    e("v_add_u32 v82, %d, v82" % TBL_OFF)
    e("ds_read_b128 v[116:119], v82 offset:16")
    e("v_lshlrev_b32 v82, 3, v0")
    e("v_add_u32 v83, %d, v82" % AGGL_OFF)
    for q in range(16):
        e("ds_read_b64 %s, v83 offset:%d" % (vr(AG + 2 * q, 2), q * PB * 8))
    e("s_waitcnt lgkmcnt(0)")
    e("v_mov_b32 v120, v%d" % AG)
    e("v_mov_b32 v121, v%d" % (AG + 1))
    for q in range(1, 16):
        e("v_fma_f32 v122, -v117, v121, v%d" % (AG + 2 * q))
        e("v_fma_f32 v123, v117, v120, v%d" % (AG + 2 * q + 1))
        e("v_fma_f32 v120, v116, v120, v122")
        e("v_fma_f32 v121, v116, v121, v123")
    e("s_mul_i32 s37, s%d, %d" % (S_CB, PB))
    e("v_add_u32 v124, s37, v0")
    e("v_lshlrev_b32 v124, 3, v124")
    e("v_add_u32 v124, %d, v124" % AGG_OFF)
    e("s_mul_i32 s37, s%d, %d" % (S_RB, P * 8))
    e("buffer_store_dwordx2 v[120:121], v124, s[%d:%d], s37 offen sc1" % (S_WS, S_WS + 3))
    e.nop(2)
    e("v_mov_b32 v120, 0")
    e("v_mov_b32 v121, 0")
    e("s_cmp_eq_u32 s%d, 0" % S_RB)
    e("s_cbranch_scc1 k1s_nocarry")
    PG = 216
    e("s_mov_b32 s52, 0")
    e.label("k1s_poll")
    e("v_mov_b32 v125, v124")
    for c in range(15):
        e("buffer_load_dwordx2 %s, v125, s[%d:%d], 0 offen sc1" % (vr(PG + 2 * c, 2), S_WS, S_WS + 3))
        if c < 14:
            e("v_add_u32 v125, %d, v125" % (P * 8))
    e("s_waitcnt vmcnt(0)")
    e("s_mov_b64 s[54:55], 0")
    for c in range(15):
        e("s_cmp_gt_u32 s%d, %d" % (S_RB, c))
        e("s_cbranch_scc0 k1s_chk")
        e("v_cmp_eq_u32 vcc, -1, v%d" % (PG + 2 * c))
        e("s_or_b64 s[54:55], s[54:55], vcc")
        e("v_cmp_eq_u32 vcc, -1, v%d" % (PG + 2 * c + 1))
        e("s_or_b64 s[54:55], s[54:55], vcc")
    e.label("k1s_chk")
    e("s_cmp_eq_u64 s[54:55], 0")
    e("s_cbranch_scc1 k1s_polled")
    e("s_sleep 4")
    e("s_add_u32 s52, s52, 1")
    e("s_cmp_lt_u32 s52, 0x40000")
    e("s_cbranch_scc1 k1s_poll")
    e.label("k1s_polled")
    ts_stamp(e, 13, 1, S_WS)
    for c in range(15):
        e("s_cmp_gt_u32 s%d, %d" % (S_RB, c))
        e("s_cbranch_scc0 k1s_nocarry")
        e("v_fma_f32 v122, -v119, v121, v%d" % (PG + 2 * c))
        e("v_fma_f32 v123, v119, v120, v%d" % (PG + 2 * c + 1))
        e("v_fma_f32 v120, v118, v120, v122")
        e("v_fma_f32 v121, v118, v121, v123")
    e.label("k1s_nocarry")
    e("v_add_u32 v83, %d, v82" % CARL_OFF)
    for q in range(16):
        e("ds_write_b64 v83, v[120:121] offset:%d" % (q * PB * 8))
        if q < 15:
            e("v_fma_f32 v122, -v117, v121, v%d" % (AG + 2 * q))
            e("v_fma_f32 v123, v117, v120, v%d" % (AG + 2 * q + 1))
            e("v_fma_f32 v120, v116, v120, v122")
            e("v_fma_f32 v121, v116, v121, v123")
    e.label("k1s_nocomb")
    e("s_mul_i32 s37, s%d, %d" % (S_W, 32 * SOP + 128))
    e("s_add_u32 s37, s37, %d" % OUTL_OFF)
    e("v_mul_u32_u24 v126, %d, v4" % SOP)
    e("v_lshl_add_u32 v126, v3, 4, v126")
    e("v_add_u32 v126, s37, v126")
    e("s_lshl_b32 s39, s%d, 7" % S_RB)
    e("s_lshl_b32 s40, s%d, 5" % S_W)
    e("s_add_u32 s39, s39, s40")
    e("v_add_u32 v127, s39, v4")
    e("s_movk_i32 s41, %d" % HP)
    e("v_mul_lo_u32 v127, v127, s41")
    e("v_lshl_add_u32 v127, v3, 4, v127")
    e("v_cmp_lt_u32 vcc, 7, v3")
    e("v_mov_b32 v128, 0")
    e("v_mov_b32 v129, %d" % (1280 - 2 * PB))
    e("v_cndmask_b32 v128, v128, v129, vcc")
    e("s_mul_i32 s40, s%d, %d" % (S_CB, 2 * PB))
    e("s_add_u32 s40, s40, %d" % H_OFF)
    e("v_add3_u32 v127, v127, v128, s40")
    e("v_mul_u32_u24 v82, %d, v4" % (8 * SOP + 32))
    e("v_lshl_add_u32 v82, v3, 1, v82")
    e("v_add_u32 v82, s37, v82")
    e("s_waitcnt lgkmcnt(0)")
    e("s_barrier")
    ts_stamp(e, 14, 1, S_WS)
    e("v_add_u32 v81, %d, v80" % CARL_OFF)
    for j in range(NJ):
        e("ds_read_b64 %s, v81 offset:%d" % (vr(HST + 2 * j, 2), j * 128))
    e("s_waitcnt lgkmcnt(0)")
    for s in range(8):
        scan_step(s)
        for j in range(NJ):
            hr, hi = HST + 2 * j, HST + 2 * j + 1
            cr = CST + 4 * j + 2
            e("v_mul_f32 v%d, v%d, v%d" % (ur(j, s), cr, hr))
            e("v_mul_f32 v%d, -v%d, v%d" % (ui(j, s), cr, hi))
        for j in range(NJ):
            hr, hi = HST + 2 * j, HST + 2 * j + 1
            ci = CST + 4 * j + 3
            e("v_fma_f32 v%d, -v%d, v%d, v%d" % (ur(j, s), ci, hi, ur(j, s)))
            e("v_fma_f32 v%d, -v%d, v%d, v%d" % (ui(j, s), ci, hr, ui(j, s)))
    PK = 84
    for part, uf in enumerate((ur, ui)):
        for j in range(NJ):
            o = PK + (part * NJ + j) * 4
            for k in range(4):
                e("v_cvt_pk_bf16_f32 v%d, v%d, v%d" % (o + k, uf(j, 2 * k), uf(j, 2 * k + 1)))
            for k in range(4):
                off = part * 2 * PB + 32 * j
                e("ds_write_b16 v82, v%d offset:%d" % (o + k, 2 * k * SOP + off))
                e("ds_write_b16_d16_hi v82, v%d offset:%d" % (o + k, (2 * k + 1) * SOP + off))
    RD = 136
    e("s_waitcnt lgkmcnt(0)")
    for i in range(8):
        e("ds_read_b128 %s, v126 offset:%d" % (vr(RD + 4 * i, 4), 4 * i * SOP + (i >> 1) * 32))
        e("s_mov_b32 s%d, %d" % (40 + i, 4 * i * HP))
    e("s_waitcnt lgkmcnt(0)")
    e.wt = bool(int(os.environ.get("GEN_WT_S", "1")))
    for i in range(8):
        e("buffer_store_dwordx4 %s, v127, s[%d:%d], s%d offen" % (vr(RD + 4 * i, 4), S_WS, S_WS + 3, 40 + i))
    e.wt = True
    ts_stamp(e, 15, 1, S_WS)
    e("s_waitcnt vmcnt(0)")
    ts_stamp(e, 16, 1, S_WS)
    e("s_endpgm")

    e.label("k1_ffn")
    e("s_sub_u32 s%d, s%d, 10" % (S_CB, S_CB))
    VA = 10
    VT = 16
    FR = 28
    ACC = 124
    e("s_lshr_b32 s37, s%d, 1" % S_W)
    e("s_lshl_b32 s37, s37, 13")
    e("v_mov_b32 v28, s37")
    lds_read_addrs(e, VA, 28, F_BUF, F_NB)
    e("v_lshrrev_b32 v5, 2, v3")
    e("v_and_b32 v6, 3, v3")
    e("v_lshlrev_b32 v7, 12, v4")
    e("v_lshl_add_u32 v7, v5, 7, v7")
    e("v_lshl_add_u32 v7, v6, 3, v7")
    e("v_lshrrev_b32 v8, 1, v5")
    e("v_and_b32 v9, 1, v4")
    e("v_lshl_or_b32 v8, v9, 1, v8")
    e("s_and_b32 s37, s%d, 1" % S_W)
    e("s_lshl_b32 s37, s37, 11")
    e("s_add_u32 s37, s37, %d" % (128 * 128))
    e("v_add_u32 v7, s37, v7")
    for pr in range(4):
        e("v_xor_b32 v5, %d, v8" % pr)
        e("v_lshl_add_u32 v5, v5, 5, v7")
        for b in range(F_NB):
            e("v_add_u32 v%d, %d, v5" % (VT + pr * F_NB + b, b * F_BUF))

    def f_frag(setid, i):
        return FR + (setid * 12 + i) * 4

    def f_reads(s, ks, setid):
        buf = s % F_NB
        out = []
        for i in range(4):
            out.append("ds_read_b128 %s, v%d offset:%d" % (vr(f_frag(setid, i), 4), VA + ks * F_NB + buf, i * 2048))
        for b in range(8):
            for h in range(2):
                out.append("ds_read_b64_tr_b16 %s, v%d offset:%d" % (vr(f_frag(setid, 4 + b) + 2 * h, 2), VT + (b & 3) * F_NB + buf,
                                                                   ks * 16384 + (b >> 2) * 1024 + h * 512))
        return out

    main_loop(e, f_reads, 4, 8, f_frag, lambda st, j: f_frag(st, 4 + j), ACC, True)

    e("s_barrier")
    e("s_mul_i32 s37, s%d, %d" % (S_W, 64 * FOP))
    e("v_mul_u32_u24 v10, %d, v3" % FOP)
    e("v_lshl_add_u32 v10, v4, 3, v10")
    e("v_add_u32 v10, s37, v10")
    e("s_mov_b32 s48, 0xbfb8aa3b")
    e.nop(4)
    T = 28
    for a in range(4):
        for m in range(4):
            src = [ACC + (a * 8 + 2 * m) * 4 + r for r in range(4)] + [ACC + (a * 8 + 2 * m + 1) * 4 + r for r in range(4)]
            tb = T + ((a * 4 + m) & 1) * 24
            for k in range(4):
                e("v_cvt_pk_bf16_f32 v%d, v%d, v%d" % (tb + 16 + k, src[2 * k], src[2 * k + 1]))
            for k in range(4):
                e("v_lshlrev_b32 v%d, 16, v%d" % (tb + 2 * k, tb + 16 + k))
                e("v_and_b32 v%d, 0xffff0000, v%d" % (tb + 2 * k + 1, tb + 16 + k))
            for k in range(8):
                e("v_mul_f32 v%d, s48, v%d" % (tb + 8 + k, tb + k))
            for k in range(8):
                e("v_exp_f32 v%d, v%d" % (tb + 8 + k, tb + 8 + k))
            for k in range(8):
                e("v_add_f32 v%d, 1.0, v%d" % (tb + 8 + k, tb + 8 + k))
            for k in range(8):
                e("v_rcp_f32 v%d, v%d" % (tb + 8 + k, tb + 8 + k))
            for k in range(8):
                e("v_mul_f32 v%d, v%d, v%d" % (tb + k, tb + k, tb + 8 + k))
            for k in range(4):
                e("v_cvt_pk_bf16_f32 v%d, v%d, v%d" % (tb + 20 + k, tb + 2 * k, tb + 2 * k + 1))
            e("ds_write_b64 v10, %s offset:%d" % (vr(tb + 20, 2), 16 * a * FOP + 64 * m))
            e("ds_write_b64 v10, %s offset:%d" % (vr(tb + 22, 2), 16 * a * FOP + 64 * m + 32))
        if a == 0:
            e("v_mul_u32_u24 v11, %d, v4" % FOP)
            e("v_lshl_add_u32 v11, v3, 4, v11")
            e("v_add_u32 v11, s37, v11")
            e("s_lshl_b32 s39, s%d, 7" % S_RB)
            e("s_lshr_b32 s40, s%d, 1" % S_W)
            e("s_lshl_b32 s40, s40, 6")
            e("s_add_u32 s39, s39, s40")
            e("v_add_u32 v12, s39, v4")
            e("s_movk_i32 s41, %d" % HP)
            e("v_mul_lo_u32 v12, v12, s41")
            e("v_lshl_add_u32 v12, v3, 4, v12")
            e("s_lshl_b32 s40, s%d, 9" % S_CB)
            e("s_and_b32 s41, s%d, 1" % S_W)
            e("s_lshl_b32 s41, s41, 8")
            e("s_add_u32 s40, s40, s41")
            e("s_add_u32 s40, s40, %d" % (H_OFF + 2 * P * 2))
            e("v_add_u32 v12, s40, v12")
        RD = ACC + a * 32
        e("s_waitcnt lgkmcnt(0)")
        for i in range(4):
            e("ds_read_b128 %s, v11 offset:%d" % (vr(RD + 4 * i, 4), (16 * a + 4 * i) * FOP))
            e("s_mov_b32 s%d, %d" % (40 + i, (16 * a + 4 * i) * HP))
        e("s_waitcnt lgkmcnt(0)")
        e.wt = bool(int(os.environ.get("GEN_WT_F", "1")))
        for i in range(4):
            e("buffer_store_dwordx4 %s, v12, s[%d:%d], s%d offen" % (vr(RD + 4 * i, 4), S_WS, S_WS + 3, 40 + i))
        e.wt = True
    ts_stamp(e, 15, 1, S_WS)
    e("s_waitcnt vmcnt(0)")
    ts_stamp(e, 16, 1, S_WS)
    e.label("k1_exit")
    e("s_endpgm")

    e.label("k1_loader")
    e("s_sub_u32 s39, s%d, 4" % S_W)
    e("s_lshl_b32 s39, s39, 1")
    e("s_lshl_b32 s%d, s39, 10" % S_T0)
    e("s_add_u32 s%d, s%d, 1024" % (S_T1, S_T0))
    e("s_cmp_ge_u32 s%d, 10" % S_CB)
    e("s_cbranch_scc1 k1_ldf")
    VD = 10
    srd(e, S_BRE, 68, 69, P * D * 2)
    srd(e, S_BIM, 70, 71, P * D * 2)
    for vw in range(2):
        vd = VD + vw * 8
        e("s_add_u32 s%d, s39, %d" % (S_VW, vw))
        lane_rows(e, S_VW)
        e("s_lshl_b32 s37, s%d, 7" % S_RB)
        e("v_add_u32 v9, s37, v8")
        e("v_mul_lo_u32 v9, v9, s36")
        e("v_add_u32 v9, v9, v5")
        for i in range(4):
            e("v_add_u32 v%d, %d, v9" % (vd + i, XN_OFF + i * 32 * XW))
        e("s_mul_i32 s37, s%d, %d" % (S_CB, PB))
        e("v_add_u32 v9, s37, v7")
        e("s_movk_i32 s37, %d" % XP)
        e("v_mul_lo_u32 v9, v9, s37")
        e("v_add_u32 v9, v9, v5")
        e("v_mov_b32 v%d, v9" % (vd + 4))
        e("v_add_u32 v%d, %d, v9" % (vd + 5, 32 * XP))
        e("v_mov_b32 v%d, v9" % (vd + 6))
        e("v_add_u32 v%d, %d, v9" % (vd + 7, 32 * XP))
    loader_loop(e, S_NB, S_BUF, 8, VD, [S_WS] * 4 + [S_BRE, S_BRE, S_BIM, S_BIM], [S_K] * 8)
    e.label("k1_ldf")
    e("s_sub_u32 s%d, s%d, 10" % (S_CB, S_CB))
    srd(e, S_W1, 78, 79, D * F * 2)
    for vw in range(2):
        vd = VD + vw * 12
        e("s_add_u32 s%d, s39, %d" % (S_VW, vw))
        lane_rows(e, S_VW)
        e("s_lshl_b32 s37, s%d, 7" % S_RB)
        e("v_add_u32 v9, s37, v7")
        e("v_mul_lo_u32 v9, v9, s36")
        e("v_add_u32 v9, v9, v5")
        for i in range(4):
            e("v_add_u32 v%d, %d, v9" % (vd + i, XN_OFF + i * 32 * XW))
        e("v_and_b32 v7, 7, v2")
        e("v_lshrrev_b32 v8, 1, v6")
        e("v_and_b32 v8, 1, v8")
        e("s_movk_i32 s37, %d" % (F * 2))
        e("v_mul_lo_u32 v9, v6, s37")
        e("s_lshl_b32 s38, s%d, 9" % S_CB)
        e("s_lshl_b32 s40, s%d, 7" % S_VW)
        e("s_add_u32 s38, s38, s40")
        e("v_add_u32 v9, s38, v9")
        for odd in range(2):
            e("v_or_b32 v5, %d, v8" % (2 * odd))
            e("v_lshlrev_b32 v5, 1, v5")
            e("v_xor_b32 v5, v5, v7")
            e("v_lshl_add_u32 v5, v5, 4, v9")
            for i in range(odd, 8, 2):
                e("v_add_u32 v%d, %d, v5" % (vd + 4 + i, i * 8 * F * 2))
    loader_loop(e, F_NB, F_BUF, 12, VD, [S_WS] * 4 + [S_W1] * 8, [S_K] * 4 + [S_K2] * 8)
```

```python
from gen import *
import os

NSTAGE = 10
NJ = 4
PB = 16 * NJ
S_NB, F_NB = 4, 3
S_BUF = (128 + 2 * PB) * 128
F_BUF = (128 + 256) * 128
K1_LDS = 163840
TBL_OFF = S_NB * S_BUF
AGGL_OFF = 2 * S_BUF
CARL_OFF = AGGL_OFF + 16 * PB * 8
SOP = 4 * PB + 16
OUTL_OFF = 3 * S_BUF
FOP = 272

S_WS = 8
S_BRE, S_BIM = 12, 16
S_LRE, S_LIM, S_LDT = 24, 56, 60
S_W1 = 12
S_CB, S_RB, S_W = 30, 31, 32
S_K, S_K2 = 33, 35
S_T0, S_T1, S_VW = 34, 28, 29
LOG2E = 0x3FB8AA3B
INV2PI = 0x3E22F983


def loader_loop(e, nb, bufsz, nslot, vD, slot_srd, slot_soff):
    def dma(s):
        buf = s % nb
        e("s_movk_i32 s%d, %d" % (S_K, 128 * s))
        e("s_mov_b32 s%d, %d" % (S_K2, 64 * F * 2 * s))
        for i in range(nslot):
            for vw in range(2):
                e("s_add_u32 m0, s%d, %d" % (S_T1 if vw else S_T0, buf * bufsz + i * 4096))
                e("s_nop 0")
                e("buffer_load_dwordx4 v%d, s[%d:%d], s%d offen lds" % (vD + vw * nslot + i, slot_srd[i], slot_srd[i] + 3, slot_soff[i]))
    n2 = 2 * nslot
    pf = nb
    for s in range(pf):
        if (s + 1) * n2 > 63:
            e("s_waitcnt vmcnt(%d)" % (63 - n2))
        dma(s)
    e("s_waitcnt vmcnt(%d)" % min(63, (pf - 1) * n2))
    e("s_barrier")
    for s in range(NSTAGE - 1):
        inflight = min(s + pf - 1, NSTAGE - 1) - (s + 1)
        e("s_waitcnt vmcnt(%d)" % min(63, inflight * n2))
        e("s_barrier")
        if s + pf < NSTAGE:
            dma(s + pf)
    e("s_endpgm")


def main_loop(e, reads, nacc_a, nacc_b, fragA, fragB, ACC, swap):
    def mfmas(setid, first):
        out = []
        for i in range(nacc_a):
            for j in range(nacc_b):
                acc = ACC + (i * nacc_b + j) * 4
                a, b = fragA(setid, i), fragB(setid, j)
                if swap:
                    a, b = b, a
                c = "0" if first else vr(acc, 4)
                out.append("v_mfma_f32_16x16x32_bf16 %s, %s, %s, %s" % (vr(acc, 4), vr(a, 4), vr(b, 4), c))
        return out

    def interleave(mf, extra):
        k = 0
        for m in mf:
            e(m)
            if k < len(extra):
                e(extra[k])
                k += 1
        while k < len(extra):
            e(extra[k])
            k += 1

    e("s_barrier")
    ts_stamp(e, 1, 1, S_WS)
    for r in reads(0, 0, 0):
        e(r)
    for s in range(NSTAGE):
        e("s_waitcnt lgkmcnt(0)")
        interleave(mfmas(0, s == 0), reads(s, 1, 1))
        extra = []
        e("s_waitcnt lgkmcnt(0)")
        if s + 1 < NSTAGE:
            e("s_barrier")
            extra = reads(s + 1, 0, 0)
        interleave(mfmas(1, False), extra)
        ts_stamp(e, 2 + s, 1, S_WS)


def lane_rows(e, sw):
    e("s_and_b32 s37, s%d, 1" % sw)
    e("s_lshl_b32 s38, s37, 2")
    e("v_add_u32 v5, s38, v4")
    e("v_and_b32 v5, 7, v5")
    e("v_and_b32 v6, 7, v2")
    e("v_xor_b32 v5, v5, v6")
    e("v_lshlrev_b32 v5, 4, v5")
    e("v_lshrrev_b32 v6, 3, v2")
    e("s_lshl_b32 s38, s%d, 3" % sw)
    e("v_add_u32 v7, s38, v6")
    e("v_lshrrev_b32 v8, 5, v2")
    e("s_lshl_b32 s38, s37, 1")
    e("v_add_u32 v8, s38, v8")
    e("v_lshlrev_b32 v8, 3, v8")
    e("v_and_b32 v9, 3, v6")
    e("v_add_u32 v8, v8, v9")
    e("s_lshr_b32 s38, s%d, 1" % sw)
    e("s_lshl_b32 s38, s38, 2")
    e("v_add_u32 v8, s38, v8")


def lds_read_addrs(e, base_v, rowbase_v, bufsz, nb):
    for ks in range(2):
        e("v_lshrrev_b32 v5, 1, v3")
        e("v_or_b32 v6, %d, v4" % (4 * ks))
        e("v_xor_b32 v5, v5, v6")
        e("v_lshlrev_b32 v5, 4, v5")
        e("v_lshl_add_u32 v5, v3, 7, v5")
        e("v_add_u32 v5, v5, v%d" % rowbase_v)
        for b in range(nb):
            e("v_add_u32 v%d, %d, v5" % (base_v + ks * nb + b, b * bufsz))


def cmul(e, dr, di, ar, ai, br, bi, t):
    e("v_mul_f32 v%d, v%d, v%d" % (t, ar, br))
    e("v_mul_f32 v%d, v%d, v%d" % (t + 1, ar, bi))
    e("v_fma_f32 v%d, -v%d, v%d, v%d" % (t, ai, bi, t))
    e("v_fma_f32 v%d, v%d, v%d, v%d" % (t + 1, ai, br, t + 1))
    e("v_mov_b32 v%d, v%d" % (dr, t))
    e("v_mov_b32 v%d, v%d" % (di, t + 1))


def gen_k1(e):
    kernel_begin(e, "k1_kernel")
    e("s_cmp_ge_u32 s2, 256")
    e("s_cbranch_scc1 k1_exit")
    e("s_load_dwordx8 s[64:71], s[0:1], 8")
    e("s_load_dwordx2 s[76:77], s[0:1], 56")
    e("s_load_dwordx2 s[78:79], s[0:1], 80")
    e("s_load_dwordx2 s[80:81], s[0:1], 112")
    e("v_lshrrev_b32 v1, 6, v0")
    e("v_and_b32 v2, 63, v0")
    e("v_readfirstlane_b32 s%d, v1" % S_W)
    e("v_and_b32 v3, 15, v0")
    e("v_lshrrev_b32 v4, 4, v2")
    e("s_and_b32 s%d, s2, 7" % S_RB)
    e("s_lshl_b32 s%d, s%d, 1" % (S_RB, S_RB))
    e("s_lshr_b32 s34, s2, 7")
    e("s_add_u32 s%d, s%d, s34" % (S_RB, S_RB))
    e("s_lshr_b32 s%d, s2, 3" % S_CB)
    e("s_and_b32 s%d, s%d, 15" % (S_CB, S_CB))
    e("s_movk_i32 s36, %d" % XW)
    e("s_waitcnt lgkmcnt(0)")
    srd(e, S_WS, 80, 81, WS_USED)
    ts_stamp(e, 0, 1, S_WS)
    e("s_cmp_ge_u32 s%d, 4" % S_W)
    e("s_cbranch_scc1 k1_loader")
    e("s_cmp_ge_u32 s%d, 10" % S_CB)
    e("s_cbranch_scc1 k1_ffn")

    NBT = 2 * NJ
    VA = 20
    VB = 28
    FR = 40
    ACC = 136
    srd(e, S_LRE, 64, 65, P * 2)
    srd(e, S_LIM, 66, 67, P * 2)
    srd(e, S_LDT, 76, 77, P * 2)
    e("s_mul_i32 s37, s%d, %d" % (S_CB, PB))
    e("v_add_u32 v9, s37, v0")
    e("v_lshlrev_b32 v9, 1, v9")
    e("buffer_load_ushort v40, v9, s[%d:%d], 0 offen" % (S_LRE, S_LRE + 3))
    e("buffer_load_ushort v41, v9, s[%d:%d], 0 offen" % (S_LIM, S_LIM + 3))
    e("buffer_load_ushort v42, v9, s[%d:%d], 0 offen" % (S_LDT, S_LDT + 3))
    e("s_lshl_b32 s37, s%d, 12" % S_W)
    e("v_mov_b32 v36, s37")
    lds_read_addrs(e, VA, 36, S_BUF, S_NB)
    e("v_mov_b32 v36, %d" % (128 * 128))
    lds_read_addrs(e, VB, 36, S_BUF, S_NB)
    e("s_waitcnt vmcnt(0)")
    e("v_lshlrev_b32 v40, 16, v40")
    e("v_lshlrev_b32 v41, 16, v41")
    e("v_lshlrev_b32 v42, 16, v42")
    e("s_mov_b32 s37, 0x%x" % LOG2E)
    e("s_mov_b32 s38, 0x%x" % INV2PI)
    e("v_mul_f32 v42, s37, v42")
    e("v_exp_f32 v42, v42")
    e.nop(1)
    rne_bf16(e, 42, 42)
    e("v_mul_f32 v43, v42, v40")
    e("v_mul_f32 v44, v42, v41")
    e("v_mul_f32 v43, s37, v43")
    e("v_exp_f32 v43, v43")
    e("v_mul_f32 v44, s38, v44")
    e("v_rndne_f32 v45, v44")
    e("v_sub_f32 v44, v44, v45")
    e("v_sin_f32 v45, v44")
    e("v_cos_f32 v46, v44")
    e.nop(1)
    e("v_mul_f32 v48, v43, v46")
    e("v_mul_f32 v49, v43, v45")
    e("v_add_f32 v45, -1.0, v48")
    e("v_mul_f32 v46, v40, v40")
    e("v_fma_f32 v46, v41, v41, v46")
    e("v_rcp_f32 v47, v46")
    e("v_mul_f32 v50, v45, v40")
    e("v_fma_f32 v50, v49, v41, v50")
    e("v_mul_f32 v51, v49, v40")
    e("v_fma_f32 v51, -v45, v41, v51")
    e("v_add_f32 v47, v47, v47")
    e("v_mul_f32 v50, v50, v47")
    e("v_mul_f32 v51, v51, v47")
    e("v_mov_b32 v52, v48")
    e("v_mov_b32 v53, v49")
    for _ in range(3):
        cmul(e, 52, 53, 52, 53, 52, 53, 56)
    e("v_mov_b32 v54, v52")
    e("v_mov_b32 v55, v53")
    for _ in range(4):
        cmul(e, 54, 55, 54, 55, 54, 55, 56)
    e("v_lshlrev_b32 v9, 5, v0")
    e("v_add_u32 v9, %d, v9" % TBL_OFF)
    e("ds_write_b128 v9, v[48:51]")
    e("ds_write_b128 v9, v[52:55] offset:16")
    e("s_waitcnt lgkmcnt(0)")

    def s_frag(setid, i):
        return FR + (setid * (2 + NBT) + i) * 4

    def s_reads(s, ks, setid):
        buf = s % S_NB
        out = []
        for i in range(2):
            out.append("ds_read_b128 %s, v%d offset:%d" % (vr(s_frag(setid, i), 4), VA + ks * S_NB + buf, i * 2048))
        for j in range(NBT):
            out.append("ds_read_b128 %s, v%d offset:%d" % (vr(s_frag(setid, 2 + j), 4), VB + ks * S_NB + buf, j * 2048))
        return out

    main_loop(e, s_reads, 2, NBT, s_frag, lambda st, j: s_frag(st, 2 + j), ACC, False)

    def ur(j, s):
        return ACC + ((s >> 2) * NBT + j) * 4 + (s & 3)

    def ui(j, s):
        return ACC + ((s >> 2) * NBT + NJ + j) * 4 + (s & 3)

    CST = 40
    HST = 60
    TMP = 70
    e("v_lshlrev_b32 v9, 5, v3")
    e("v_add_u32 v9, %d, v9" % TBL_OFF)
    for j in range(NJ):
        e("ds_read_b128 %s, v9 offset:%d" % (vr(CST + 4 * j, 4), j * 512))
    e.nop(8)
    e("s_waitcnt lgkmcnt(0)")
    for j in range(NJ):
        e("v_mov_b32 v%d, v%d" % (HST + 2 * j, ur(j, 0)))
        e("v_mov_b32 v%d, v%d" % (HST + 2 * j + 1, ui(j, 0)))

    def scan_step(s):
        for j in range(NJ):
            hr, hi = HST + 2 * j, HST + 2 * j + 1
            ai = CST + 4 * j + 1
            t = TMP + 2 * j
            e("v_fma_f32 v%d, -v%d, v%d, v%d" % (t, ai, hi, ur(j, s)))
            e("v_fma_f32 v%d, v%d, v%d, v%d" % (t + 1, ai, hr, ui(j, s)))
        for j in range(NJ):
            hr, hi = HST + 2 * j, HST + 2 * j + 1
            ar = CST + 4 * j
            t = TMP + 2 * j
            e("v_fma_f32 v%d, v%d, v%d, v%d" % (hr, ar, hr, t))
            e("v_fma_f32 v%d, v%d, v%d, v%d" % (hi, ar, hi, t + 1))

    for s in range(1, 8):
        scan_step(s)
    e("s_lshl_b32 s37, s%d, 2" % S_W)
    e("v_add_u32 v80, s37, v4")
    e("v_mul_u32_u24 v80, %d, v80" % PB)
    e("v_add_u32 v80, v80, v3")
    e("v_lshlrev_b32 v80, 3, v80")
    e("v_add_u32 v81, %d, v80" % AGGL_OFF)
    for j in range(NJ):
        e("ds_write_b64 v81, %s offset:%d" % (vr(HST + 2 * j, 2), j * 128))
    e("s_waitcnt lgkmcnt(0)")
    e("s_barrier")
    ts_stamp(e, 12, 1, S_WS)
    e("s_cmp_lg_u32 s%d, 0" % S_W)
    e("s_cbranch_scc1 k1s_nocomb")
    AG = 84
    e("v_lshlrev_b32 v82, 5, v0")
    e("v_add_u32 v82, %d, v82" % TBL_OFF)
    e("ds_read_b128 v[116:119], v82 offset:16")
    e("v_lshlrev_b32 v82, 3, v0")
    e("v_add_u32 v83, %d, v82" % AGGL_OFF)
    for q in range(16):
        e("ds_read_b64 %s, v83 offset:%d" % (vr(AG + 2 * q, 2), q * PB * 8))
    e("s_waitcnt lgkmcnt(0)")
    e("v_mov_b32 v120, v%d" % AG)
    e("v_mov_b32 v121, v%d" % (AG + 1))
    for q in range(1, 16):
        e("v_fma_f32 v122, -v117, v121, v%d" % (AG + 2 * q))
        e("v_fma_f32 v123, v117, v120, v%d" % (AG + 2 * q + 1))
        e("v_fma_f32 v120, v116, v120, v122")
        e("v_fma_f32 v121, v116, v121, v123")
    e("s_mul_i32 s37, s%d, %d" % (S_CB, PB))
    e("v_add_u32 v124, s37, v0")
    e("v_lshlrev_b32 v124, 3, v124")
    e("v_add_u32 v124, %d, v124" % AGG_OFF)
    e("s_mul_i32 s37, s%d, %d" % (S_RB, P * 8))
    e("buffer_store_dwordx2 v[120:121], v124, s[%d:%d], s37 offen sc1" % (S_WS, S_WS + 3))
    e.nop(2)
    e("v_mov_b32 v120, 0")
    e("v_mov_b32 v121, 0")
    e("s_cmp_eq_u32 s%d, 0" % S_RB)
    e("s_cbranch_scc1 k1s_nocarry")
    PG = 216
    e("s_mov_b32 s52, 0")
    e.label("k1s_poll")
    e("v_mov_b32 v125, v124")
    for c in range(15):
        e("buffer_load_dwordx2 %s, v125, s[%d:%d], 0 offen sc1" % (vr(PG + 2 * c, 2), S_WS, S_WS + 3))
        if c < 14:
            e("v_add_u32 v125, %d, v125" % (P * 8))
    e("s_waitcnt vmcnt(0)")
    e("s_mov_b64 s[54:55], 0")
    for c in range(15):
        e("s_cmp_gt_u32 s%d, %d" % (S_RB, c))
        e("s_cbranch_scc0 k1s_chk")
        e("v_cmp_eq_u32 vcc, -1, v%d" % (PG + 2 * c))
        e("s_or_b64 s[54:55], s[54:55], vcc")
        e("v_cmp_eq_u32 vcc, -1, v%d" % (PG + 2 * c + 1))
        e("s_or_b64 s[54:55], s[54:55], vcc")
    e.label("k1s_chk")
    e("s_cmp_eq_u64 s[54:55], 0")
    e("s_cbranch_scc1 k1s_polled")
    e("s_sleep 4")
    e("s_add_u32 s52, s52, 1")
    e("s_cmp_lt_u32 s52, 0x40000")
    e("s_cbranch_scc1 k1s_poll")
    e.label("k1s_polled")
    ts_stamp(e, 13, 1, S_WS)
    for c in range(15):
        e("s_cmp_gt_u32 s%d, %d" % (S_RB, c))
        e("s_cbranch_scc0 k1s_nocarry")
        e("v_fma_f32 v122, -v119, v121, v%d" % (PG + 2 * c))
        e("v_fma_f32 v123, v119, v120, v%d" % (PG + 2 * c + 1))
        e("v_fma_f32 v120, v118, v120, v122")
        e("v_fma_f32 v121, v118, v121, v123")
    e.label("k1s_nocarry")
    e("v_add_u32 v83, %d, v82" % CARL_OFF)
    for q in range(16):
        e("ds_write_b64 v83, v[120:121] offset:%d" % (q * PB * 8))
        if q < 15:
            e("v_fma_f32 v122, -v117, v121, v%d" % (AG + 2 * q))
            e("v_fma_f32 v123, v117, v120, v%d" % (AG + 2 * q + 1))
            e("v_fma_f32 v120, v116, v120, v122")
            e("v_fma_f32 v121, v116, v121, v123")
    e.label("k1s_nocomb")
    e("s_mul_i32 s37, s%d, %d" % (S_W, 32 * SOP + 128))
    e("s_add_u32 s37, s37, %d" % OUTL_OFF)
    e("v_mul_u32_u24 v126, %d, v4" % SOP)
    e("v_lshl_add_u32 v126, v3, 4, v126")
    e("v_add_u32 v126, s37, v126")
    e("s_lshl_b32 s39, s%d, 7" % S_RB)
    e("s_lshl_b32 s40, s%d, 5" % S_W)
    e("s_add_u32 s39, s39, s40")
    e("v_add_u32 v127, s39, v4")
    e("s_movk_i32 s41, %d" % HP)
    e("v_mul_lo_u32 v127, v127, s41")
    e("v_lshl_add_u32 v127, v3, 4, v127")
    e("v_cmp_lt_u32 vcc, 7, v3")
    e("v_mov_b32 v128, 0")
    e("v_mov_b32 v129, %d" % (1280 - 2 * PB))
    e("v_cndmask_b32 v128, v128, v129, vcc")
    e("s_mul_i32 s40, s%d, %d" % (S_CB, 2 * PB))
    e("s_add_u32 s40, s40, %d" % H_OFF)
    e("v_add3_u32 v127, v127, v128, s40")
    e("v_mul_u32_u24 v82, %d, v4" % (8 * SOP + 32))
    e("v_lshl_add_u32 v82, v3, 1, v82")
    e("v_add_u32 v82, s37, v82")
    e("s_waitcnt lgkmcnt(0)")
    e("s_barrier")
    ts_stamp(e, 14, 1, S_WS)
    e("v_add_u32 v81, %d, v80" % CARL_OFF)
    for j in range(NJ):
        e("ds_read_b64 %s, v81 offset:%d" % (vr(HST + 2 * j, 2), j * 128))
    e("s_waitcnt lgkmcnt(0)")
    for s in range(8):
        scan_step(s)
        for j in range(NJ):
            hr, hi = HST + 2 * j, HST + 2 * j + 1
            cr = CST + 4 * j + 2
            e("v_mul_f32 v%d, v%d, v%d" % (ur(j, s), cr, hr))
            e("v_mul_f32 v%d, -v%d, v%d" % (ui(j, s), cr, hi))
        for j in range(NJ):
            hr, hi = HST + 2 * j, HST + 2 * j + 1
            ci = CST + 4 * j + 3
            e("v_fma_f32 v%d, -v%d, v%d, v%d" % (ur(j, s), ci, hi, ur(j, s)))
            e("v_fma_f32 v%d, -v%d, v%d, v%d" % (ui(j, s), ci, hr, ui(j, s)))
    PK = 84
    for part, uf in enumerate((ur, ui)):
        for j in range(NJ):
            o = PK + (part * NJ + j) * 4
            for k in range(4):
                e("v_cvt_pk_bf16_f32 v%d, v%d, v%d" % (o + k, uf(j, 2 * k), uf(j, 2 * k + 1)))
            for k in range(4):
                off = part * 2 * PB + 32 * j
                e("ds_write_b16 v82, v%d offset:%d" % (o + k, 2 * k * SOP + off))
                e("ds_write_b16_d16_hi v82, v%d offset:%d" % (o + k, (2 * k + 1) * SOP + off))
    RD = 136
    e("s_waitcnt lgkmcnt(0)")
    for i in range(8):
        e("ds_read_b128 %s, v126 offset:%d" % (vr(RD + 4 * i, 4), 4 * i * SOP + (i >> 1) * 32))
        e("s_mov_b32 s%d, %d" % (40 + i, 4 * i * HP))
    e("s_waitcnt lgkmcnt(0)")
    e.wt = bool(int(os.environ.get("GEN_WT_S", "1")))
    for i in range(8):
        e("buffer_store_dwordx4 %s, v127, s[%d:%d], s%d offen" % (vr(RD + 4 * i, 4), S_WS, S_WS + 3, 40 + i))
    e.wt = True
    ts_stamp(e, 15, 1, S_WS)
    e("s_waitcnt vmcnt(0)")
    ts_stamp(e, 16, 1, S_WS)
    e("s_endpgm")

    e.label("k1_ffn")
    e("s_sub_u32 s%d, s%d, 10" % (S_CB, S_CB))
    VA = 10
    VT = 16
    FR = 28
    ACC = 124
    e("s_lshr_b32 s37, s%d, 1" % S_W)
    e("s_lshl_b32 s37, s37, 13")
    e("v_mov_b32 v28, s37")
    lds_read_addrs(e, VA, 28, F_BUF, F_NB)
    e("v_lshrrev_b32 v5, 2, v3")
    e("v_and_b32 v6, 3, v3")
    e("v_lshlrev_b32 v7, 12, v4")
    e("v_lshl_add_u32 v7, v5, 7, v7")
    e("v_lshl_add_u32 v7, v6, 3, v7")
    e("v_lshrrev_b32 v8, 1, v5")
    e("v_and_b32 v9, 1, v4")
    e("v_lshl_or_b32 v8, v9, 1, v8")
    e("s_and_b32 s37, s%d, 1" % S_W)
    e("s_lshl_b32 s37, s37, 11")
    e("s_add_u32 s37, s37, %d" % (128 * 128))
    e("v_add_u32 v7, s37, v7")
    for pr in range(4):
        e("v_xor_b32 v5, %d, v8" % pr)
        e("v_lshl_add_u32 v5, v5, 5, v7")
        for b in range(F_NB):
            e("v_add_u32 v%d, %d, v5" % (VT + pr * F_NB + b, b * F_BUF))

    def f_frag(setid, i):
        return FR + (setid * 12 + i) * 4

    def f_reads(s, ks, setid):
        buf = s % F_NB
        out = []
        for i in range(4):
            out.append("ds_read_b128 %s, v%d offset:%d" % (vr(f_frag(setid, i), 4), VA + ks * F_NB + buf, i * 2048))
        for b in range(8):
            for h in range(2):
                out.append("ds_read_b64_tr_b16 %s, v%d offset:%d" % (vr(f_frag(setid, 4 + b) + 2 * h, 2), VT + (b & 3) * F_NB + buf,
                                                                   ks * 16384 + (b >> 2) * 1024 + h * 512))
        return out

    main_loop(e, f_reads, 4, 8, f_frag, lambda st, j: f_frag(st, 4 + j), ACC, True)

    e("s_barrier")
    e("s_mul_i32 s37, s%d, %d" % (S_W, 64 * FOP))
    e("v_mul_u32_u24 v10, %d, v3" % FOP)
    e("v_lshl_add_u32 v10, v4, 3, v10")
    e("v_add_u32 v10, s37, v10")
    e("s_mov_b32 s48, 0xbfb8aa3b")
    e("s_mov_b32 s49, 0xbfb8aa3b")
    e("s_mov_b32 s50, 1.0")
    e("s_mov_b32 s51, 1.0")
    e.nop(4)
    T = 28
    for a in range(4):
        for m in range(4):
            src = [ACC + (a * 8 + 2 * m) * 4 + r for r in range(4)] + [ACC + (a * 8 + 2 * m + 1) * 4 + r for r in range(4)]
            tb = T + ((a * 4 + m) & 1) * 24
            for k in range(4):
                e("v_cvt_pk_bf16_f32 v%d, v%d, v%d" % (tb + 16 + k, src[2 * k], src[2 * k + 1]))
            for k in range(4):
                e("v_lshlrev_b32 v%d, 16, v%d" % (tb + 2 * k, tb + 16 + k))
                e("v_and_b32 v%d, 0xffff0000, v%d" % (tb + 2 * k + 1, tb + 16 + k))
            if int(os.environ.get("GEN_PK", "0")):
                for k in range(4):
                    e("v_pk_mul_f32 %s, %s, s[48:49]" % (vr(tb + 8 + 2 * k, 2), vr(tb + 2 * k, 2)))
                for k in range(8):
                    e("v_exp_f32 v%d, v%d" % (tb + 8 + k, tb + 8 + k))
                for k in range(4):
                    e("v_pk_add_f32 %s, %s, s[50:51]" % (vr(tb + 8 + 2 * k, 2), vr(tb + 8 + 2 * k, 2)))
                for k in range(8):
                    e("v_rcp_f32 v%d, v%d" % (tb + 8 + k, tb + 8 + k))
                for k in range(4):
                    e("v_pk_mul_f32 %s, %s, %s" % (vr(tb + 2 * k, 2), vr(tb + 2 * k, 2), vr(tb + 8 + 2 * k, 2)))
            else:
                for k in range(8):
                    e("v_mul_f32 v%d, s48, v%d" % (tb + 8 + k, tb + k))
                for k in range(8):
                    e("v_exp_f32 v%d, v%d" % (tb + 8 + k, tb + 8 + k))
                for k in range(8):
                    e("v_add_f32 v%d, 1.0, v%d" % (tb + 8 + k, tb + 8 + k))
                for k in range(8):
                    e("v_rcp_f32 v%d, v%d" % (tb + 8 + k, tb + 8 + k))
                for k in range(8):
                    e("v_mul_f32 v%d, v%d, v%d" % (tb + k, tb + k, tb + 8 + k))
            for k in range(4):
                e("v_cvt_pk_bf16_f32 v%d, v%d, v%d" % (tb + 20 + k, tb + 2 * k, tb + 2 * k + 1))
            e("ds_write_b64 v10, %s offset:%d" % (vr(tb + 20, 2), 16 * a * FOP + 64 * m))
            e("ds_write_b64 v10, %s offset:%d" % (vr(tb + 22, 2), 16 * a * FOP + 64 * m + 32))
        if a == 0:
            e("v_mul_u32_u24 v11, %d, v4" % FOP)
            e("v_lshl_add_u32 v11, v3, 4, v11")
            e("v_add_u32 v11, s37, v11")
            e("s_lshl_b32 s39, s%d, 7" % S_RB)
            e("s_lshr_b32 s40, s%d, 1" % S_W)
            e("s_lshl_b32 s40, s40, 6")
            e("s_add_u32 s39, s39, s40")
            e("v_add_u32 v12, s39, v4")
            e("s_movk_i32 s41, %d" % HP)
            e("v_mul_lo_u32 v12, v12, s41")
            e("v_lshl_add_u32 v12, v3, 4, v12")
            e("s_lshl_b32 s40, s%d, 9" % S_CB)
            e("s_and_b32 s41, s%d, 1" % S_W)
            e("s_lshl_b32 s41, s41, 8")
            e("s_add_u32 s40, s40, s41")
            e("s_add_u32 s40, s40, %d" % (H_OFF + 2 * P * 2))
            e("v_add_u32 v12, s40, v12")
        def ffn_stores(ap):
            e("s_waitcnt lgkmcnt(0)")
            e.wt = bool(int(os.environ.get("GEN_WT_F", "1")))
            for i in range(4):
                e("s_mov_b32 s%d, %d" % (40 + i, (16 * ap + 4 * i) * HP))
            for i in range(4):
                e("buffer_store_dwordx4 %s, v12, s[%d:%d], s%d offen" % (vr(ACC + ap * 32 + 4 * i, 4), S_WS, S_WS + 3, 40 + i))
            e.wt = True
        if a > 0:
            ffn_stores(a - 1)
        RD = ACC + a * 32
        for i in range(4):
            e("ds_read_b128 %s, v11 offset:%d" % (vr(RD + 4 * i, 4), (16 * a + 4 * i) * FOP))
    ffn_stores(3)
    ts_stamp(e, 15, 1, S_WS)
    e("s_waitcnt vmcnt(0)")
    ts_stamp(e, 16, 1, S_WS)
    e.label("k1_exit")
    e("s_endpgm")

    e.label("k1_loader")
    e("s_sub_u32 s39, s%d, 4" % S_W)
    e("s_lshl_b32 s39, s39, 1")
    e("s_lshl_b32 s%d, s39, 10" % S_T0)
    e("s_add_u32 s%d, s%d, 1024" % (S_T1, S_T0))
    e("s_cmp_ge_u32 s%d, 10" % S_CB)
    e("s_cbranch_scc1 k1_ldf")
    VD = 10
    srd(e, S_BRE, 68, 69, P * D * 2)
    srd(e, S_BIM, 70, 71, P * D * 2)
    for vw in range(2):
        vd = VD + vw * 8
        e("s_add_u32 s%d, s39, %d" % (S_VW, vw))
        lane_rows(e, S_VW)
        e("s_lshl_b32 s37, s%d, 7" % S_RB)
        e("v_add_u32 v9, s37, v8")
        e("v_mul_lo_u32 v9, v9, s36")
        e("v_add_u32 v9, v9, v5")
        for i in range(4):
            e("v_add_u32 v%d, %d, v9" % (vd + i, XN_OFF + i * 32 * XW))
        e("s_mul_i32 s37, s%d, %d" % (S_CB, PB))
        e("v_add_u32 v9, s37, v7")
        e("s_movk_i32 s37, %d" % XP)
        e("v_mul_lo_u32 v9, v9, s37")
        e("v_add_u32 v9, v9, v5")
        e("v_mov_b32 v%d, v9" % (vd + 4))
        e("v_add_u32 v%d, %d, v9" % (vd + 5, 32 * XP))
        e("v_mov_b32 v%d, v9" % (vd + 6))
        e("v_add_u32 v%d, %d, v9" % (vd + 7, 32 * XP))
    loader_loop(e, S_NB, S_BUF, 8, VD, [S_WS] * 4 + [S_BRE, S_BRE, S_BIM, S_BIM], [S_K] * 8)
    e.label("k1_ldf")
    e("s_sub_u32 s%d, s%d, 10" % (S_CB, S_CB))
    srd(e, S_W1, 78, 79, D * F * 2)
    for vw in range(2):
        vd = VD + vw * 12
        e("s_add_u32 s%d, s39, %d" % (S_VW, vw))
        lane_rows(e, S_VW)
        e("s_lshl_b32 s37, s%d, 7" % S_RB)
        e("v_add_u32 v9, s37, v7")
        e("v_mul_lo_u32 v9, v9, s36")
        e("v_add_u32 v9, v9, v5")
        for i in range(4):
            e("v_add_u32 v%d, %d, v9" % (vd + i, XN_OFF + i * 32 * XW))
        e("v_and_b32 v7, 7, v2")
        e("v_lshrrev_b32 v8, 1, v6")
        e("v_and_b32 v8, 1, v8")
        e("s_movk_i32 s37, %d" % (F * 2))
        e("v_mul_lo_u32 v9, v6, s37")
        e("s_lshl_b32 s38, s%d, 9" % S_CB)
        e("s_lshl_b32 s40, s%d, 7" % S_VW)
        e("s_add_u32 s38, s38, s40")
        e("v_add_u32 v9, s38, v9")
        for odd in range(2):
            e("v_or_b32 v5, %d, v8" % (2 * odd))
            e("v_lshlrev_b32 v5, 1, v5")
            e("v_xor_b32 v5, v5, v7")
            e("v_lshl_add_u32 v5, v5, 4, v9")
            for i in range(odd, 8, 2):
                e("v_add_u32 v%d, %d, v5" % (vd + 4 + i, i * 8 * F * 2))
    loader_loop(e, F_NB, F_BUF, 12, VD, [S_WS] * 4 + [S_W1] * 8, [S_K] * 4 + [S_K2] * 8)
```

```python
import sys

NAME = "recurrent_scan__ssm_conv_s5__dense_activation_silu__prompt"
L, D, P, F = 2048, 640, 640, 1536
KK = 2 * P + F

HP = KK * 2 + 128
XP = D * 2
XW = D * 2 + 128
XN_OFF = 0
W2P = F * 2 + 128
W1_OFF = XN_OFF + L * XW
W2_OFF = W1_OFF
H_OFF = W2_OFF + D * W2P
SB_OFF = H_OFF + L * HP
AGG_OFF = SB_OFF + L * D * 4
TS_OFF = AGG_OFF + 16 * P * 8
WS_USED = TS_OFF + 3 * 1024 * 128
import os
TS = int(os.environ.get("GEN_TS", "0"))
STFLAG = os.environ.get("GEN_ST", "sc1")

HEADER = open("cdna_kernels/%s.s.ref" % NAME).read().split("; Override launch geometry")[0]


class Em:
    def __init__(self):
        self.lines = []
        self.wt = False

    def __call__(self, s):
        if s.startswith("buffer_store") and " sc1" not in s and STFLAG and self.wt:
            s += " " + STFLAG
        self.lines.append("    " + s)

    def label(self, s):
        self.lines.append(s + ":")

    def raw(self, s):
        self.lines.append(s)

    def nop(self, n):
        while n > 0:
            k = min(n, 16)
            self("s_nop %d" % (k - 1))
            n -= k

    def text(self):
        return "\n".join(self.lines) + "\n"


def vr(a, n):
    return "v[%d:%d]" % (a, a + n - 1)


def sr(a, n):
    return "s[%d:%d]" % (a, a + n - 1)


def srd(e, dst, lo, hi, size):
    e("s_mov_b32 s%d, s%d" % (dst, lo))
    e("s_and_b32 s%d, s%d, 0xffff" % (dst + 1, hi))
    e("s_mov_b32 s%d, %d" % (dst + 2, size))
    e("s_mov_b32 s%d, 0x00020000" % (dst + 3))


def kernel_begin(e, name):
    e.raw(".globl %s" % name)
    e.raw(".p2align 8")
    e.raw(".type %s,@function" % name)
    e.label(name)


def kernel_desc(e, name, vgpr=256, sgpr=102):
    e.raw(".p2align 6")
    e.raw(".amdhsa_kernel %s" % name)
    e.raw("  .amdhsa_next_free_vgpr %d" % vgpr)
    e.raw("  .amdhsa_next_free_sgpr %d" % sgpr)
    e.raw("  .amdhsa_accum_offset %d" % (((vgpr + 3) // 4) * 4))
    e.raw("  .amdhsa_group_segment_fixed_size 0")
    e.raw("  .amdhsa_kernarg_size 120")
    e.raw("  .amdhsa_user_sgpr_count 2")
    e.raw("  .amdhsa_user_sgpr_kernarg_segment_ptr 1")
    e.raw("  .amdhsa_system_sgpr_workgroup_id_x 1")
    e.raw("  .amdhsa_float_denorm_mode_32 3")
    e.raw(".end_amdhsa_kernel")


def ts_stamp(e, idx, kern, srdws, real=False):
    if not TS:
        return
    sb, vb = (40, 96) if kern == 0 else (90, 250)
    e("%s s[%d:%d]" % ("s_memrealtime" if real else "s_memtime", sb, sb + 1))
    e("s_waitcnt lgkmcnt(0)")
    e("v_mov_b32 v%d, s%d" % (vb, sb))
    e("s_lshl_b32 s%d, s2, 7" % (sb + 2))
    e("s_add_u32 s%d, s%d, %d" % (sb + 2, sb + 2, TS_OFF + kern * 1024 * 128 + idx * 4))
    e("v_mov_b32 v%d, s%d" % (vb + 1, sb + 2))
    e("s_mov_b64 s[%d:%d], exec" % (sb + 4, sb + 5))
    e("v_cmp_eq_u32 vcc, 0, v0")
    e("s_and_b64 exec, exec, vcc")
    e("buffer_store_dword v%d, v%d, s[%d:%d], 0 offen" % (vb, vb + 1, srdws, srdws + 3))
    e("s_mov_b64 exec, s[%d:%d]" % (sb + 4, sb + 5))


def dpp_allreduce16(e, v, t):
    for mod in ("quad_perm:[1,0,3,2]", "quad_perm:[2,3,0,1]", "row_half_mirror", "row_mirror"):
        e.nop(2)
        e("v_add_f32_dpp v%d, v%d, v%d %s row_mask:0xf bank_mask:0xf" % (t, v, v, mod))
        e("v_mov_b32 v%d, v%d" % (v, t))


def rne_bf16(e, dst, src):
    e("v_cvt_pk_bf16_f32 v%d, v%d, v%d" % (dst, src, src))
    e("v_lshlrev_b32 v%d, 16, v%d" % (dst, dst))


K0_LN = 128
K0_CPB = 0
K0_TW1 = 0
K0_ILC = 0
K0_TW2 = 240
K0_SEN = 20
K0_PF = int(os.environ.get("GEN_PF", "320"))
K0_TOTAL = K0_LN + K0_CPB + K0_TW1 + K0_ILC + K0_TW2 + K0_SEN
K0_CP = int(os.environ.get("GEN_CP", "0"))
K0_GRID = K0_TOTAL + K0_PF + K0_CP


def gen_k0(e):
    kernel_begin(e, "k0_kernel")
    e("s_load_dwordx2 s[20:21], s[0:1], 0")
    e("s_load_dwordx4 s[24:27], s[0:1], 24")
    e("s_load_dwordx4 s[28:31], s[0:1], 40")
    e("s_load_dwordx4 s[32:35], s[0:1], 80")
    e("s_load_dwordx2 s[36:37], s[0:1], 112")
    e("s_waitcnt lgkmcnt(0)")
    srd(e, 8, 36, 37, WS_USED)
    ts_stamp(e, 0, 0, 8, True)
    e("s_cmp_lt_u32 s2, %d" % K0_LN)
    e("s_cbranch_scc1 k0_ln")
    e("s_cmp_lt_u32 s2, %d" % (K0_LN + K0_CPB))
    e("s_cbranch_scc1 k0_cpb")
    e("s_cmp_lt_u32 s2, %d" % (K0_LN + K0_CPB + K0_TW1))
    e("s_cbranch_scc1 k0_tw1")
    e("s_cmp_lt_u32 s2, %d" % (K0_LN + K0_CPB + K0_TW1 + K0_ILC))
    e("s_cbranch_scc1 k0_ilc")
    e("s_cmp_lt_u32 s2, %d" % (K0_TOTAL - K0_SEN))
    e("s_cbranch_scc1 k0_tw2")
    e("s_cmp_lt_u32 s2, %d" % K0_TOTAL)
    e("s_cbranch_scc0 k0_pf")
    e("s_sub_u32 s3, s2, %d" % (K0_TOTAL - K0_SEN))
    e("s_lshl_b32 s3, s3, 12")
    e("s_add_u32 s3, s3, %d" % AGG_OFF)
    e("v_lshlrev_b32 v1, 4, v0")
    e("v_add_u32 v1, s3, v1")
    for i in range(4):
        e("v_mov_b32 v%d, -1" % (4 + i))
    e("buffer_store_dwordx4 v[4:7], v1, s[8:11], 0 offen")
    e.label("k0_exit")
    e("s_endpgm")
    e.label("k0_pf")
    e("s_cmp_lt_u32 s2, %d" % K0_GRID)
    e("s_cbranch_scc0 k0_exit")
    e("s_cmp_lt_u32 s2, %d" % (K0_TOTAL + K0_PF))
    e("s_cbranch_scc1 k0_pf2")
    e("s_sub_u32 s3, s2, %d" % (K0_TOTAL + K0_PF))
    e("s_lshr_b32 s3, s3, 3")
    e("s_lshl_b32 s3, s3, 14")
    e("s_getpc_b64 s[16:17]")
    e.label("k0_pc")
    e("s_add_u32 s16, s16, k1_kernel-k0_pc")
    e("s_addc_u32 s17, s17, 0")
    e("v_lshlrev_b32 v1, 4, v0")
    e("v_add_u32 v1, s3, v1")
    e("s_mov_b32 s4, k_code_end-k1_kernel-16")
    for i in range(4):
        e("v_cmp_ge_u32 vcc, s4, v1")
        e("s_and_saveexec_b64 s[6:7], vcc")
        e("s_cbranch_execz k0_cp_done")
        e("global_load_dwordx4 %s, v1, s[16:17]" % vr(4 + 4 * i, 4))
        e("v_add_u32 v1, 4096, v1")
    e.label("k0_cp_done")
    e("s_waitcnt vmcnt(0)")
    e("s_endpgm")
    e.label("k0_pf2")
    e("s_sub_u32 s3, s2, %d" % K0_TOTAL)
    e("s_mov_b32 s12, s24")
    e("s_mov_b32 s13, s25")
    e("s_mov_b32 s14, %d" % (P * D * 2))
    e("s_mov_b32 s6, s3")
    for k, (lo, hi, first) in enumerate(((26, 27, 50), (28, 29, 100), (30, 31, 150), (32, 33, 200))):
        e("s_sub_u32 s7, s3, %d" % first)
        e("s_cmp_ge_u32 s3, %d" % first)
        e("s_cselect_b32 s12, s%d, s12" % lo)
        e("s_cselect_b32 s13, s%d, s13" % hi)
        e("s_cselect_b32 s6, s7, s6")
        if k >= 3:
            e("s_cselect_b32 s14, %d, s14" % (D * F * 2))
    e("s_and_b32 s13, s13, 0xffff")
    e("s_mov_b32 s15, 0x00020000")
    e("s_lshl_b32 s6, s6, 14")
    e("v_lshlrev_b32 v1, 4, v0")
    e("v_add_u32 v1, s6, v1")
    for i in range(4):
        e("buffer_load_dwordx4 %s, v1, s[12:15], 0 offen" % vr(4 + 4 * i, 4))
        e("v_add_u32 v1, 4096, v1")
    e("s_waitcnt vmcnt(0)")
    e("s_endpgm")

    e.label("k0_ln")
    srd(e, 12, 20, 21, L * D * 2)
    e("v_lshrrev_b32 v1, 4, v0")
    e("v_and_b32 v2, 15, v0")
    e("s_lshl_b32 s3, s2, 4")
    e("v_add_u32 v1, s3, v1")
    e("s_movk_i32 s4, %d" % XW)
    e("v_mul_lo_u32 v3, v1, s4")
    e("v_lshl_add_u32 v3, v2, 4, v3")
    e("s_movk_i32 s4, %d" % XP)
    e("v_mul_lo_u32 v1, v1, s4")
    e("v_lshl_add_u32 v1, v2, 4, v1")
    for i in range(5):
        e("buffer_load_dwordx4 %s, v1, s[12:15], 0 offen offset:%d" % (vr(8 + 4 * i, 4), 256 * i))
    e("s_waitcnt vmcnt(0)")
    ts_stamp(e, 1, 0, 8, True)
    X = 32
    for i in range(20):
        e("v_lshlrev_b32 v%d, 16, v%d" % (X + 2 * i, 8 + i))
        e("v_and_b32 v%d, 0xffff0000, v%d" % (X + 2 * i + 1, 8 + i))
    for a in range(4):
        e("v_add_f32 v%d, v%d, v%d" % (80 + a, X + a, X + 4 + a))
    for i in range(2, 10):
        for a in range(4):
            e("v_add_f32 v%d, v%d, v%d" % (80 + a, 80 + a, X + 4 * i + a))
    e("v_add_f32 v80, v80, v81")
    e("v_add_f32 v82, v82, v83")
    e("v_add_f32 v80, v80, v82")
    dpp_allreduce16(e, 80, 81)
    e("s_mov_b32 s5, 0x3acccccd")
    e("s_mov_b32 s6, 0x44200000")
    e("v_mul_f32 v84, s5, v80")
    e("v_fma_f32 v85, -v84, s6, v80")
    e("v_fma_f32 v84, v85, s5, v84")
    for a in range(4):
        e("v_sub_f32 v%d, v%d, v84" % (86 + a, X + a))
        e("v_mul_f32 v%d, v%d, v%d" % (80 + a, 86 + a, 86 + a))
    for i in range(1, 10):
        for a in range(4):
            e("v_sub_f32 v%d, v%d, v84" % (86 + a, X + 4 * i + a))
            e("v_fma_f32 v%d, v%d, v%d, v%d" % (80 + a, 86 + a, 86 + a, 80 + a))
    e("v_add_f32 v80, v80, v81")
    e("v_add_f32 v82, v82, v83")
    e("v_add_f32 v80, v80, v82")
    dpp_allreduce16(e, 80, 81)
    e("v_mul_f32 v85, s5, v80")
    e("v_fma_f32 v86, -v85, s6, v80")
    e("v_fma_f32 v85, v86, s5, v85")
    rne_bf16(e, 84, 84)
    rne_bf16(e, 85, 85)
    e("v_add_f32 v85, 0x3727c5ac, v85")
    rne_bf16(e, 85, 85)
    e("v_sqrt_f32 v85, v85")
    e.nop(1)
    rne_bf16(e, 85, 85)
    e("v_rcp_f32 v86, v85")
    e.nop(1)
    for i in range(20):
        a, b = X + 2 * i, X + 2 * i + 1
        e("v_sub_f32 v%d, v%d, v84" % (a, a))
        e("v_sub_f32 v%d, v%d, v84" % (b, b))
        e("v_cvt_pk_bf16_f32 v90, v%d, v%d" % (a, b))
        e("v_lshlrev_b32 v%d, 16, v90" % a)
        e("v_and_b32 v%d, 0xffff0000, v90" % b)
        e("v_mul_f32 v91, v%d, v86" % a)
        e("v_mul_f32 v92, v%d, v86" % b)
        e("v_fma_f32 v93, -v91, v85, v%d" % a)
        e("v_fma_f32 v94, -v92, v85, v%d" % b)
        e("v_fma_f32 v91, v93, v86, v91")
        e("v_fma_f32 v92, v94, v86, v92")
        e("v_cvt_pk_bf16_f32 v%d, v91, v92" % (8 + i))
    for i in range(5):
        e("buffer_store_dwordx4 %s, v3, s[8:11], 0 offen offset:%d" % (vr(8 + 4 * i, 4), 256 * i))
    ts_stamp(e, 2, 0, 8, True)
    e("s_waitcnt vmcnt(0)")
    ts_stamp(e, 3, 0, 8, True)
    e("s_endpgm")

    e.label("k0_cpb")
    e("s_sub_u32 s3, s2, %d" % K0_LN)
    e("s_mov_b32 s4, 0x1999999a")
    e("s_mul_hi_u32 s5, s3, s4")
    e("s_mul_i32 s6, s5, 10")
    e("s_sub_u32 s6, s3, s6")
    e("s_cmp_ge_u32 s6, 5")
    e("s_cselect_b32 s12, s26, s24")
    e("s_cselect_b32 s13, s27, s25")
    e("s_cselect_b32 s7, 5, 0")
    e("s_and_b32 s13, s13, 0xffff")
    e("s_mov_b32 s14, %d" % (P * D * 2))
    e("s_mov_b32 s15, 0x00020000")
    e("s_sub_u32 s6, s6, s7")
    e("s_mul_i32 s5, s5, 80")
    e("s_lshl_b32 s6, s6, 4")
    e("s_add_u32 s5, s5, s6")
    e("v_lshrrev_b32 v1, 4, v0")
    e("v_and_b32 v2, 15, v0")
    e("s_movk_i32 s4, %d" % XP)
    e("v_add_u32 v3, s5, v1")
    e("v_mul_lo_u32 v3, v3, s4")
    e("v_lshl_add_u32 v3, v2, 4, v3")
    e("s_lshl_b32 s6, s3, 4")
    e("v_add_u32 v4, s6, v1")
    e("s_movk_i32 s4, %d" % XW)
    e("v_mul_lo_u32 v4, v4, s4")
    e("v_lshl_add_u32 v4, v2, 4, v4")
    e("v_add_u32 v4, %d, v4" % W1_OFF)
    for i in range(5):
        e("buffer_load_dwordx4 %s, v3, s[12:15], 0 offen offset:%d" % (vr(8 + 4 * i, 4), 256 * i))
    e("s_waitcnt vmcnt(0)")
    for i in range(5):
        e("buffer_store_dwordx4 %s, v4, s[8:11], 0 offen offset:%d" % (vr(8 + 4 * i, 4), 256 * i))
    e("s_endpgm")

    e.label("k0_tw1")
    e("s_sub_u32 s3, s2, %d" % (K0_LN + K0_CPB))
    srd(e, 12, 32, 33, D * F * 2)
    e("s_mov_b32 s16, 0xaaaaaab")
    e("s_mul_hi_u32 s17, s3, s16")
    e("s_mul_i32 s18, s17, 24")
    e("s_sub_u32 s18, s3, s18")
    e("s_movk_i32 s4, %d" % (F * 2))
    e("s_movk_i32 s5, %d" % XW)
    e("s_mul_i32 s6, s17, %d" % (64 * F * 2))
    e("s_lshl_b32 s19, s18, 7")
    e("s_add_u32 s6, s6, s19")
    e("s_mul_i32 s7, s18, %d" % (64 * XW))
    e("s_lshl_b32 s19, s17, 7")
    e("s_add_u32 s7, s7, s19")
    e("s_add_u32 s7, s7, %d" % W1_OFF)
    e("s_branch k0_tr")
    e.label("k0_tw2")
    e("s_sub_u32 s3, s2, %d" % (K0_LN + K0_CPB + K0_TW1 + K0_ILC))
    srd(e, 12, 34, 35, D * F * 2)
    e("s_mov_b32 s16, 0x1999999a")
    e("s_mul_hi_u32 s17, s3, s16")
    e("s_mul_i32 s18, s17, 10")
    e("s_sub_u32 s18, s3, s18")
    e("s_movk_i32 s4, %d" % XP)
    e("s_movk_i32 s5, %d" % W2P)
    e("s_mul_i32 s6, s17, %d" % (64 * XP))
    e("s_lshl_b32 s19, s18, 7")
    e("s_add_u32 s6, s6, s19")
    e("s_mul_i32 s7, s18, %d" % (64 * W2P))
    e("s_lshl_b32 s19, s17, 7")
    e("s_add_u32 s7, s7, s19")
    e("s_add_u32 s7, s7, %d" % W2_OFF)
    e.label("k0_tr")
    e("v_lshrrev_b32 v1, 2, v0")
    e("v_and_b32 v2, 3, v0")
    e("v_mul_lo_u32 v3, v1, s4")
    e("v_lshl_add_u32 v3, v2, 5, v3")
    e("v_add_u32 v3, s6, v3")
    e("buffer_load_dwordx4 v[8:11], v3, s[12:15], 0 offen")
    e("buffer_load_dwordx4 v[12:15], v3, s[12:15], 0 offen offset:16")
    e("v_mul_u32_u24 v4, 144, v1")
    e("v_lshl_add_u32 v4, v2, 5, v4")
    e("s_waitcnt vmcnt(0)")
    ts_stamp(e, 1, 0, 8, True)
    e("ds_write_b128 v4, v[8:11]")
    e("ds_write_b128 v4, v[12:15] offset:16")
    e("s_waitcnt lgkmcnt(0)")
    e("s_barrier")
    e("v_mul_u32_u24 v5, %d, v2" % (144 * 16))
    e("v_lshl_add_u32 v5, v1, 1, v5")
    for k in range(16):
        e("ds_read_u16 v%d, v5 offset:%d" % (24 + k, 144 * k))
    e("v_mul_lo_u32 v6, v1, s5")
    e("v_lshl_add_u32 v6, v2, 5, v6")
    e("v_add_u32 v6, s7, v6")
    e("s_waitcnt lgkmcnt(0)")
    for k in range(8):
        e("v_lshl_or_b32 v%d, v%d, 16, v%d" % (16 + k, 25 + 2 * k, 24 + 2 * k))
    e("buffer_store_dwordx4 v[16:19], v6, s[8:11], 0 offen")
    e("buffer_store_dwordx4 v[20:23], v6, s[8:11], 0 offen offset:16")
    ts_stamp(e, 2, 0, 8, True)
    e("s_waitcnt vmcnt(0)")
    ts_stamp(e, 3, 0, 8, True)
    e("s_endpgm")

    e.label("k0_ilc")
    e("s_sub_u32 s3, s2, %d" % (K0_LN + K0_CPB + K0_TW1))
    srd(e, 12, 28, 29, P * D * 2)
    srd(e, 16, 30, 31, P * D * 2)
    e("v_lshrrev_b32 v1, 4, v0")
    e("v_and_b32 v2, 15, v0")
    e("s_lshl_b32 s4, s3, 4")
    e("v_add_u32 v1, s4, v1")
    e("s_movk_i32 s5, %d" % XP)
    e("s_movk_i32 s6, %d" % HP)
    e("v_mul_lo_u32 v3, v1, s5")
    e("v_lshl_add_u32 v3, v2, 4, v3")
    e("v_mul_lo_u32 v4, v1, s6")
    e("v_lshl_add_u32 v4, v2, 5, v4")
    e("v_add_u32 v4, %d, v4" % W2_OFF)
    for i in range(5):
        e("buffer_load_dwordx4 %s, v3, s[12:15], 0 offen offset:%d" % (vr(8 + 8 * i, 4), 256 * i))
        e("buffer_load_dwordx4 %s, v3, s[16:19], 0 offen offset:%d" % (vr(12 + 8 * i, 4), 256 * i))
    e("s_mov_b32 s7, 0x05040100")
    e("s_mov_b32 s3, 0x07060302")
    e("s_waitcnt vmcnt(0)")
    for i in range(5):
        for k in range(4):
            re, im = 8 + 8 * i + k, 12 + 8 * i + k
            e("v_perm_b32 v%d, v%d, v%d, s7" % (48 + 8 * i + 2 * k, im, re))
            e("v_perm_b32 v%d, v%d, v%d, s3" % (48 + 8 * i + 2 * k + 1, im, re))
    for i in range(5):
        e("buffer_store_dwordx4 %s, v4, s[8:11], 0 offen offset:%d" % (vr(48 + 8 * i, 4), 512 * i))
        e("buffer_store_dwordx4 %s, v4, s[8:11], 0 offen offset:%d" % (vr(52 + 8 * i, 4), 512 * i + 16))
    e("s_endpgm")


def main():
    from gen_k1 import gen_k1, K1_LDS
    from gen_k2 import gen_k2, K2_LDS
    e = Em()
    e.raw(HEADER.rstrip("\n"))
    e.raw("; @launch kernel=k0_kernel grid=(%d,1,1) block=(256,1,1) lds=9216" % K0_GRID)
    e.raw("; @launch kernel=k1_kernel grid=(256,1,1) block=(384,1,1) lds=%d" % K1_LDS)
    e.raw("; @launch kernel=k2_kernel grid=(256,1,1) block=(256,1,1) lds=%d" % K2_LDS)
    e.raw('.amdgcn_target "amdgcn-amd-amdhsa--gfx950"')
    e.raw(".text")
    gen_k0(e)
    e.wt = True
    gen_k1(e)
    gen_k2(e)
    e.label("k_code_end")
    e.raw('.section .rodata,"a"')
    kernel_desc(e, "k0_kernel", vgpr=104, sgpr=48)
    kernel_desc(e, "k1_kernel", vgpr=256, sgpr=102)
    kernel_desc(e, "k2_kernel", vgpr=256, sgpr=102)
    out = sys.argv[1] if len(sys.argv) > 1 else "cdna_kernels/%s.s" % NAME
    open(out, "w").write(e.text())
    print("wrote", out, len(e.text()), "bytes")


if __name__ == "__main__":
    main()
```
